```python
import torch

def _softmax(x, axis=-1):
    return torch.softmax(x, dim=axis)
def _gelu(x):
    return torch.nn.functional.gelu(x, approximate="tanh")
def _silu(x):
    return torch.nn.functional.silu(x)
def _sigmoid(x):
    return torch.sigmoid(x)
def _layernorm(x, axis=-1, eps=1e-5):
    m = x.mean(dim=axis, keepdim=True)
    v = x.var(dim=axis, keepdim=True, unbiased=False)
    return (x - m) / torch.sqrt(v + eps)
def _scatter_add(tgt, idx, src, axis=0):
    return tgt.clone().index_add_(axis, idx, src)
def _segment_sum(src, seg, n):
    out = torch.zeros((n,) + src.shape[1:], dtype=src.dtype)
    return out.index_add_(0, seg, src)
def _pad(x, pw):
    flat = tuple(v for pair in reversed(pw) for v in pair)
    return torch.nn.functional.pad(x, flat)

kernel_name = 'interleave_layers__sliding_block__glu_gated_bilinear__prompt'

def setup_inputs():

    _w = (lambda a: (lambda t: t.to(torch.bfloat16) if t.is_floating_point() else t)(torch.as_tensor(a)))
    def _A_setup():
        B, S, D = 1, 2048, 512
        return {
            "x": _w((lambda *s: torch.randn(*s, dtype=torch.bfloat16) * 0.05)(B, S, D)),
            "wqkv": _w((lambda *s: torch.randn(*s, dtype=torch.bfloat16) * 0.05)(D, 3 * D)),
            "wo": _w((lambda *s: torch.randn(*s, dtype=torch.bfloat16) * 0.05)(D, D)),
        }
    _A_in = _A_setup()

    def _B_setup():
        B, S, D, F = 1, 2048, 512, 1376
        return {
            "x": _w((lambda *s: torch.randn(*s, dtype=torch.bfloat16) * 0.05)(B, S, D)),
            "w_gate": _w((lambda *s: torch.randn(*s, dtype=torch.bfloat16) * 0.8)(D, F) * (D ** -0.5)),
            "w_up": _w((lambda *s: torch.randn(*s, dtype=torch.bfloat16) * 0.8)(D, F) * (D ** -0.5)),
            "w_down": _w((lambda *s: torch.randn(*s, dtype=torch.bfloat16) * 0.8)(F, D) * (F ** -0.5)),
        }
    _B_in = _B_setup()

    return {
        "A_x": _A_in["x"],
        "A_wqkv": _A_in["wqkv"],
        "A_wo": _A_in["wo"],
        "B_x": _B_in["x"],
        "B_w_gate": _B_in["w_gate"],
        "B_w_up": _B_in["w_up"],
        "B_w_down": _B_in["w_down"],
    }

def reference(A_x, A_wqkv, A_wo, B_x, B_w_gate, B_w_up, B_w_down):
    def _A_ref(x, wqkv, wo):
        B, S, D = x.shape
        H = 32; Dh = D // H; W = 256
        qkv = (lambda x, *d: x.permute(*d))((x @ wqkv).reshape(B, S, 3, H, Dh), 2, 0, 3, 1, 4)
        q, k, v = qkv[0], qkv[1], qkv[2]
        scores = torch.einsum("bhqd,bhkd->bhqk", q, k) * (Dh ** -0.5)
        idx = torch.arange(S)
        mask = (idx[:, None] - idx[None, :] >= 0) & (idx[:, None] - idx[None, :] < W)
        scores = torch.where(mask[None, None], scores, -1e9)
        p = _softmax(scores, axis=-1)
        o = torch.einsum("bhqk,bhkd->bhqd", p, v)
        return (lambda x, *d: x.permute(*d))(o, 0, 2, 1, 3).reshape(B, S, D) @ wo

    def _B_ref(x, w_gate, w_up, w_down):
        g = torch.einsum("bsd,df->bsf", x, w_gate)
        u = torch.einsum("bsd,df->bsf", x, w_up)
        h = g * u
        return torch.einsum("bsf,fd->bsd", h, w_down)

    x = A_x
    x = x + _A_ref(_layernorm(x, axis=-1), A_wqkv, A_wo)
    x = x + _B_ref(_layernorm(x, axis=-1), B_w_gate, B_w_up, B_w_down)
    x = x + _A_ref(_layernorm(x, axis=-1), A_wqkv, A_wo)
    x = x + _B_ref(_layernorm(x, axis=-1), B_w_gate, B_w_up, B_w_down)
    return x
```

```python
import re

TRANS = ("v_exp_f32", "v_log_f32", "v_rcp_f32", "v_rsq_f32", "v_sqrt_f32", "v_sin_f32", "v_cos_f32")
_reg_re = re.compile(r"^(-|abs\()?([vas])(?:(\d+)|\[(\d+):(\d+)\])\)?$")


def regs_of(op):
    op = op.strip()
    if op == "vcc":
        return [("s", "vcc")]
    if op == "exec":
        return [("s", "exec")]
    if op == "m0":
        return [("s", "m0")]
    m = _reg_re.match(op)
    if not m:
        return []
    k = m.group(2)
    if m.group(3) is not None:
        return [(k, int(m.group(3)))]
    return [(k, i) for i in range(int(m.group(4)), int(m.group(5)) + 1)]


def split_ops(text):
    parts = text.split(None, 1)
    mn = parts[0]
    if len(parts) == 1:
        return mn, [], []
    rest = parts[1]
    ops = [o.strip() for o in rest.split(",")]
    mods = []
    if ops:
        last = ops[-1].split()
        if last:
            ops[-1] = last[0]
            mods = last[1:]
    return mn, ops, mods


class Tok:
    __slots__ = ("kind", "done", "counted")

    def __init__(self, kind, counted=True):
        self.kind = kind
        self.done = False
        self.counted = counted


class Asm:
    def __init__(self):
        self.lines = []
        self.ool = []
        self.t = 0
        self.vmq = []
        self.lgq = []
        self.pending = {}
        self.valu_w = {}
        self.trans_w = {}
        self.mfma_w = {}
        self.mfma_c = {}
        self.store_r = {}
        self.sg_valu_w = {}
        self.m0_w = -100
        self.nops = 0
        self.nlabel = 0
        self.ninstr = 0
        self.smem_out = False

    def raw(self, s):
        self.lines.append(s)

    def comment(self, s):
        self.lines.append("; " + s)

    def newlabel(self, base):
        self.nlabel += 1
        return f"L{self.nlabel}_{base}"

    def label(self, name):
        self.lines.append(name + ":")

    def _out(self, s, states=1):
        self.lines.append("    " + s)
        self.t += states
        self.ninstr += 1

    def nop(self, n):
        while n > 0:
            k = min(n, 16)
            self._out(f"s_nop {k-1}", k)
            n -= k

    def _count_after(self, q, tok):
        i = q.index(tok)
        return sum(1 for x in q[i + 1:] if x.counted), i

    def wait(self, *toks):
        vm = None
        lg = None
        for tok in toks:
            if tok is None or tok.done:
                continue
            if tok.kind == "vm":
                n, i = self._count_after(self.vmq, tok)
                if vm is None or i > vm[1]:
                    vm = (n, i)
            else:
                n, i = self._count_after(self.lgq, tok)
                if lg is None or i > lg[1]:
                    lg = (n, i)
        if vm is None and lg is None:
            return
        s = "s_waitcnt"
        if vm is not None:
            s += f" vmcnt({min(vm[0], 63)})"
            self._retire(self.vmq, vm[1])
        if lg is not None:
            if self.smem_out:
                s += " lgkmcnt(0)"
                self._retire(self.lgq, len(self.lgq) - 1)
                self.smem_out = False
            else:
                s += f" lgkmcnt({min(lg[0], 15)})"
                self._retire(self.lgq, lg[1])
        self._out(s)

    def _retire(self, q, i):
        for x in q[:i + 1]:
            x.done = True
        del q[:i + 1]
        self.pending = {r: k for r, k in self.pending.items() if not k.done}

    def drain(self, vm=False, lg=False, force=False):
        s = "s_waitcnt"
        need = force
        if vm:
            need |= bool(self.vmq)
            s += " vmcnt(0)"
            if self.vmq:
                self._retire(self.vmq, len(self.vmq) - 1)
        if lg:
            need |= bool(self.lgq)
            s += " lgkmcnt(0)"
            if self.lgq:
                self._retire(self.lgq, len(self.lgq) - 1)
            self.smem_out = False
        if need:
            self._out(s)

    def assume_drained(self, vm=False, lg=False):
        if vm and self.vmq:
            self._retire(self.vmq, len(self.vmq) - 1)
        if lg and self.lgq:
            self._retire(self.lgq, len(self.lgq) - 1)
            self.smem_out = False

    def snapshot(self):
        import copy
        memo = {}
        return copy.deepcopy((self.t, self.vmq, self.lgq, self.pending, self.valu_w, self.trans_w, self.mfma_w,
                              self.mfma_c, self.store_r, self.sg_valu_w, self.m0_w, self.smem_out), memo)

    def restore(self, snap):
        import copy
        (self.t, self.vmq, self.lgq, self.pending, self.valu_w, self.trans_w, self.mfma_w,
         self.mfma_c, self.store_r, self.sg_valu_w, self.m0_w, self.smem_out) = copy.deepcopy(snap)

    def __call__(self, text, maybe=False):
        mn, ops, mods = split_ops(text)
        R = [regs_of(o) for o in ops]
        reads, writes = [], []
        kind = "salu"
        is_store = False
        wide = False
        tok = None
        if mn.startswith("v_mfma"):
            kind = "mfma"
            writes = R[0]
            reads = R[1] + R[2] + R[3]
        elif mn.startswith("v_"):
            kind = "valu"
            writes = list(R[0])
            reads = [r for x in R[1:] for r in x]
            if mn.startswith("v_permlane"):
                writes = R[0] + R[1]
                reads = R[0] + R[1]
            elif mn.startswith(("v_fmac", "v_dot2c", "v_writelane")) or "sdwa" in mn or "dpp" in mn:
                reads += R[0]
            elif mn.startswith(("v_add_co", "v_addc_co", "v_sub_co")):
                writes = R[0] + R[1]
                reads = [r for x in R[2:] for r in x]
        elif mn.startswith("ds_read"):
            kind = "ds"
            writes = R[0]
            reads = R[1]
        elif mn.startswith("ds_"):
            kind = "ds"
            reads = [r for x in R for r in x]
        elif mn.startswith("buffer_load") or mn.startswith("global_load"):
            kind = "vmem"
            if "lds" in mods or "_lds_" in mn:
                reads = [r for x in R for r in x] + [("s", "m0")]
            else:
                writes = R[0]
                reads = [r for x in R[1:] for r in x]
        elif mn.startswith(("buffer_store", "global_store", "buffer_atomic")):
            kind = "vmem"
            is_store = True
            wide = "x3" in mn or "x4" in mn
            reads = [r for x in R for r in x]
        elif mn.startswith(("buffer_wbl2", "buffer_inv")):
            kind = "vmem"
        elif mn.startswith(("s_load", "s_memtime", "s_memrealtime")):
            kind = "smem"
            writes = R[0]
            reads = [r for x in R[1:] for r in x]
        elif mn.startswith(("s_cmp", "s_cbranch", "s_branch", "s_barrier", "s_waitcnt", "s_nop", "s_sleep",
                            "s_setprio", "s_endpgm", "s_bitcmp", "s_setpc")):
            reads = [r for x in R for r in x]
        elif mn.startswith("s_"):
            writes = R[0] if R else []
            reads = [r for x in R[1:] for r in x]
        else:
            raise ValueError("unknown instruction " + text)

        need = [self.pending[r] for r in reads + writes if r in self.pending]
        if need:
            self.wait(*need)

        pad = 0

        def req(tw, n):
            nonlocal pad
            if tw is not None:
                pad = max(pad, n - (self.t - tw - 1))

        vec = lambda rs: [r for r in rs if r[0] in "va"]
        if kind == "mfma":
            for r in reads:
                req(self.valu_w.get(r), 2)
            for r in R[1] + R[2]:
                w = self.mfma_w.get(r)
                if w:
                    req(w[0], 12)
            same = (R[3][0], len(R[3])) if R[3] else None
            for r in R[3]:
                w = self.mfma_w.get(r)
                if w and (w[1], w[2]) != same:
                    req(w[0], 10)
            for r in R[0]:
                w = self.mfma_w.get(r)
                if w and (w[1], w[2]) != (R[0][0], len(R[0])):
                    req(w[0], 10)
            req(self.sg_valu_w.get(("s", "exec")), 4)
        elif kind == "valu":
            for r in vec(reads + writes):
                w = self.mfma_w.get(r)
                if w:
                    req(w[0], 12)
            for r in vec(writes):
                req(self.mfma_c.get(r), 7)
                req(self.store_r.get(r), 2)
            if mn.split("_e")[0] not in TRANS and mn not in TRANS:
                for r in vec(reads):
                    req(self.trans_w.get(r), 1)
            if mn.startswith("v_permlane") or "dpp" in mn:
                for r in vec(reads):
                    req(self.valu_w.get(r), 2)
            if mn.startswith(("v_readfirstlane", "v_readlane")):
                for r in vec(reads):
                    req(self.valu_w.get(r), 1)
            for r in reads:
                if r[0] == "s":
                    req(self.sg_valu_w.get(r), 2)
        elif kind in ("ds", "vmem"):
            for r in vec(reads + writes):
                w = self.mfma_w.get(r)
                if w:
                    req(w[0], 12)
            for r in vec(writes):
                req(self.store_r.get(r), 1)
                req(self.mfma_c.get(r), 7)
            for r in vec(reads):
                req(self.trans_w.get(r), 1)
            if kind == "vmem":
                for r in reads:
                    if r[0] == "s":
                        req(self.sg_valu_w.get(r), 5)
                if ("s", "m0") in reads:
                    req(self.m0_w, 1)
        elif kind in ("salu", "smem"):
            for r in reads:
                if r[0] == "s":
                    req(self.sg_valu_w.get(r), 1)
        if pad > 0:
            self.nops += pad
            self.nop(pad)

        now = self.t
        states = 1
        if mn == "s_nop":
            states = int(ops[0]) + 1
        self._out(text, states)

        if kind == "mfma":
            for r in R[0]:
                self.mfma_w[r] = (now, R[0][0], len(R[0]))
                self.valu_w.pop(r, None)
            for r in R[3]:
                self.mfma_c[r] = now
        elif kind == "valu":
            for r in writes:
                if r[0] == "s":
                    self.sg_valu_w[r] = now
                else:
                    self.valu_w[r] = now
                    self.mfma_w.pop(r, None)
                    if mn in TRANS:
                        self.trans_w[r] = now
                    else:
                        self.trans_w.pop(r, None)
        elif kind == "salu":
            for r in writes:
                self.sg_valu_w.pop(r, None)
                if r == ("s", "m0"):
                    self.m0_w = now
        if kind == "vmem":
            tok = Tok("vm", counted=not maybe)
            self.vmq.append(tok)
            if is_store and wide:
                for r in R[0]:
                    self.store_r[r] = now
        elif kind == "ds":
            tok = Tok("lg", counted=not maybe)
            self.lgq.append(tok)
        elif kind == "smem":
            tok = Tok("lg")
            self.lgq.append(tok)
            self.smem_out = True
        if tok is not None:
            for r in writes:
                self.pending[r] = tok
                self.mfma_w.pop(r, None)
        return tok

    def text(self):
        return "\n".join(self.lines + self.ool) + "\n"


def vr(a, n=1):
    return f"v{a}" if n == 1 else f"v[{a}:{a+n-1}]"


def ar(a, n=1):
    return f"a{a}" if n == 1 else f"a[{a}:{a+n-1}]"


def sr(a, n=1):
    return f"s{a}" if n == 1 else f"s[{a}:{a+n-1}]"
```

```python
import sys, os
sys.path.insert(0, os.path.dirname(os.path.abspath(__file__)))
from asmlib import *

KN = "interleave_layers__sliding_block__glu_gated_bilinear__prompt_kernel"

EPOCH = 0
HELLO = 0x1000
FL = 0x10000
FRP_GU = 0x20000
FRP_WD = 0x28000
DUMMY = 0x30000
FKV = 0x40000
STAMPS = 0x80000
XB = 0x100000; XB_P = 36 * 1024
HB = 0x400000; HB_P = 88 * 1024
KV = 0xA00000
PGU = 0x1200000; PGU_P = 200 * 1024
PWD = 0x1600000; PWD_P = 236 * 1024
WS_BYTES = 0x10000000
OOB = 0x7FF00000

G = 0
WQ = 65536

SRD_WS, SRD_X, SRD_WQ, SRD_OUT, SRD_R0, SRD_R1 = 4, 8, 12, 16, 20, 24
S_P = 32
S_W, S_G, S_C, S_XCD, S_R, S_N, S_HELLO, S_BUD = 50, 51, 52, 53, 54, 55, 56, 57
S_TBW, S_XBW, S_HBW, S_FLW = 58, 59, 60, 61
S_TBS, S_TBO, S_FB, S_W4K = 62, 63, 64, 65
S_E0, S_E1 = 66, 68
S_RET = 70
T0 = 28
TA = 32
S_ST = 72

V_L16 = 0
V_T1, V_T2, V_RS = 1, 2, 3
V_CS = 4
V_AUG = 8
V_OWN = 12
V_T28 = 28
V_X = 32
V_ACC = 160
A_WO, A_WD, A_STG = 0, 64, 240

NEG_BIG = 0xF149F2CA
QSCALE = 0x3EB8AA3B
ONES = 0x3F803F80


class Gen:
    def __init__(self, stop=None, stamps=False, force_slow=False, force_fallback=False):
        self.a = Asm()
        self.stop = stop
        self.stamps = stamps
        self.nst = 0
        self.stamp_names = []
        self.force_slow = force_slow
        self.force_fallback = force_fallback
        self.stopped = False

    def mfma(self, d, A, B, c=None):
        cs = vr(d, 16) if c is None else c
        self.a(f"v_mfma_f32_32x32x16_bf16 {vr(d,16)}, {A}, {B}, {cs}")

    def stamp(self, name):
        if not self.stamps:
            return
        a = self.a
        a(f"s_memrealtime {sr(S_ST,2)}")
        a.drain(lg=True)
        a(f"s_mov_b32 s{74+self.nst}, s{S_ST}")
        if len(self.stamp_names) <= self.nst:
            self.stamp_names.append(name)
        self.nst += 1
        assert self.nst <= 28

    def poll(self, mask, soff="0", cmpmask=None):
        a = self.a
        L = a.newlabel("poll"); Rr = a.newlabel("retry"); D = a.newlabel("polled")
        a(f"s_mov_b64 exec, {mask}")
        a.label(L)
        a(f"buffer_load_dword v{V_T2}, v{V_T1}, {sr(SRD_WS,4)}, {soff} offen sc1")
        a.drain(vm=True)
        if cmpmask is not None:
            a(f"v_and_b32 v{cmpmask}, 0xfffffff0, v{V_T2}")
            a(f"v_cmp_ne_u32 vcc, s{S_N}, v{cmpmask}")
        else:
            a(f"v_cmp_ne_u32 vcc, s{S_N}, v{V_T2}")
        a(f"s_cbranch_vccnz {Rr}")
        a.label(D)
        a.ool.append(f"{Rr}:\n    s_sub_u32 s{S_BUD}, s{S_BUD}, 1\n    s_cbranch_scc0 {L}\n    s_mov_b32 s{S_BUD}, 0\n    s_branch {D}")

    def full_exec(self):
        self.a("s_mov_b64 exec, -1")

    def set_flag(self, soff, sc, maybe=False):
        a = self.a
        a(f"v_mov_b32 v{V_T2}, s{S_N}")
        a("s_mov_b64 exec, 1")
        a(f"buffer_store_dword v{V_T2}, v{V_L16}, {sr(SRD_WS,4)}, {soff} offen {sc}", maybe=maybe)
        self.full_exec()

    def lane(self, dst):
        self.a(f"v_lshrrev_b32 v{dst}, 4, v{V_L16}")

    def check_stop(self, name):
        if self.stop == name:
            self.finish()
            self.stopped = True
        return self.stopped

    def finish(self):
        a = self.a
        if self.stamps:
            self.stamp("end")
            a(f"s_lshl_b32 s{T0}, s2, 2"); a(f"s_add_u32 s{T0}, s{T0}, s{S_W}"); a(f"s_lshl_b32 s{T0}, s{T0}, 8")
            a(f"s_add_u32 s{T0}, s{T0}, {STAMPS}")
            a("s_mov_b64 exec, 1")
            for i in range(self.nst):
                a(f"v_mov_b32 v{V_T2}, s{74+i}")
                a(f"buffer_store_dword v{V_T2}, v{V_L16}, {sr(SRD_WS,4)}, s{T0} offen offset:{4*i}")
            a(f"v_mov_b32 v{V_T2}, s{S_BUD}")
            a(f"buffer_store_dword v{V_T2}, v{V_L16}, {sr(SRD_WS,4)}, s{T0} offen offset:252")
        a("s_endpgm")

    def stats_finish(self, vS, vQ):
        a = self.a
        return [
            lambda: a(f"v_mul_f32 v{vS}, 0xbb000000, v{vS}"),
            lambda: a(f"v_mul_f32 v{vQ}, 0x3b000000, v{vQ}"),
            lambda: a(f"v_fma_f32 v{vQ}, -v{vS}, v{vS}, v{vQ}"),
            lambda: a(f"v_max_f32 v{vQ}, 0, v{vQ}"),
            lambda: a(f"v_add_f32 v{vQ}, 0x3727c5ac, v{vQ}"),
            lambda: a(f"v_rsq_f32 v{V_RS}, v{vQ}"),
            lambda: a(f"v_cvt_pk_bf16_f32 v{V_AUG}, v{vS}, v{vS}"),
        ]

    def stats_from_partials(self, base):
        a = self.a
        ops = []
        for step in (8, 4, 2, 1):
            for i in range(step):
                ops.append(lambda i=i, step=step: a(f"v_add_f32 v{base+i}, v{base+i}, v{base+i+step}"))
        ops.append(lambda: a(f"v_mov_b32 v{base+1}, v{base}"))
        ops.append(lambda: a(f"v_permlane32_swap_b32 v{base}, v{base+1}"))
        return ops + self.stats_finish(base, base + 1)

    def prologue(self):
        a = self.a
        a.raw(f"; @launch grid=(256,1,1) block=(256,1,1) lds=163840")
        a.raw('.amdgcn_target "amdgcn-amd-amdhsa--gfx950"')
        a.raw(".text")
        a.raw(f".globl {KN}")
        a.raw(".p2align 8")
        a.raw(f".type {KN},@function")
        a.label(KN)
        a("s_cmp_ge_u32 s2, 256")
        a("s_cbranch_scc1 L_exit")
        a.ool.append("L_exit:\n    s_endpgm")
        a(f"s_load_dwordx16 {sr(S_P,16)}, s[0:1], 0")
        a(f"s_load_dwordx2 {sr(S_P+16,2)}, s[0:1], 72")
        if self.stamps:
            self.stamp("start")
        a(f"v_lshrrev_b32 v1, 6, v0")
        a(f"v_and_b32 v0, 63, v0")
        a(f"v_readfirstlane_b32 s{S_W}, v1")
        a(f"v_lshlrev_b32 v{V_L16}, 4, v0")
        a(f"s_and_b32 s{S_XCD}, s2, 7")
        a(f"s_lshr_b32 s{S_R}, s2, 3")
        a(f"s_lshr_b32 s{S_G}, s{S_R}, 4")
        a(f"s_lshl1_add_u32 s{S_G}, s{S_XCD}, s{S_G}")
        a(f"s_and_b32 s{S_C}, s{S_R}, 15")
        a(f"s_lshl2_add_u32 s{S_TBW}, s{S_G}, s{S_W}")
        a(f"s_mul_i32 s{S_XBW}, s{S_TBW}, {XB_P}"); a(f"s_add_u32 s{S_XBW}, s{S_XBW}, {XB}")
        a(f"s_mul_i32 s{S_HBW}, s{S_TBW}, {HB_P}"); a(f"s_add_u32 s{S_HBW}, s{S_HBW}, {HB}")
        a(f"s_lshl_b32 s{S_FLW}, s{S_TBW}, 10"); a(f"s_add_u32 s{S_FLW}, s{S_FLW}, {FL}")
        a(f"s_lshr_b32 s{T0}, s{S_C}, 3"); a(f"s_lshl_b32 s{T0}, s{T0}, 1")
        a(f"s_lshl2_add_u32 s{T0}, s{S_G}, s{T0}")
        a(f"s_lshr_b32 s{T0+1}, s{S_W}, 1")
        a(f"s_add_u32 s{S_TBS}, s{T0}, s{T0+1}")
        a(f"s_xor_b32 s{S_TBO}, s{S_TBS}, 1")
        a(f"s_and_b32 s{T0}, s{S_C}, 7"); a(f"s_and_b32 s{T0+1}, s{S_W}, 1")
        a(f"s_lshl1_add_u32 s{S_FB}, s{T0}, s{T0+1}")
        a(f"s_lshl_b32 s{S_W4K}, s{S_W}, 12")
        a(f"s_mov_b32 s{S_BUD}, 400000")
        a(f"s_mov_b32 s{S_E0}, 0x0000ffff"); a(f"s_mov_b32 s{S_E0+1}, 0x0000ffff")
        a(f"s_mov_b32 s{S_E1}, 0xffff0000"); a(f"s_mov_b32 s{S_E1+1}, 0xffff0000")
        a(f"s_getreg_b32 s{S_HELLO}, hwreg(HW_REG_XCC_ID, 0, 4)")
        for srd, nb in ((SRD_WS, WS_BYTES), (SRD_X, 2048 * 1024), (SRD_WQ, 512 * 3072), (SRD_OUT, 2048 * 1024)):
            a(f"s_mov_b32 s{srd+2}, {nb}"); a(f"s_mov_b32 s{srd+3}, 0x20000")
        a(f"s_mov_b32 s{SRD_R0+3}, 0x20000"); a(f"s_mov_b32 s{SRD_R1+3}, 0x20000")
        a.drain(lg=True)
        a(f"s_mov_b64 {sr(SRD_WS,2)}, {sr(S_P+16,2)}")
        a(f"s_mov_b64 {sr(SRD_X,2)}, {sr(S_P+0,2)}")
        a(f"s_mov_b64 {sr(SRD_WQ,2)}, {sr(S_P+2,2)}")
        a(f"s_mov_b64 {sr(SRD_OUT,2)}, {sr(S_P+14,2)}")
        a(f"s_load_dword s{S_N}, {sr(S_P+16,2)}, {EPOCH}")

    def repack_loads(self):
        a = self.a
        Lwd = a.newlabel("rp_wd"); Lj = a.newlabel("rp_j"); L1 = a.newlabel("rp_one")
        self.lane(V_T1)
        a(f"s_cmp_ge_u32 s{S_R}, 22")
        a(f"s_cbranch_scc1 {Lwd}")
        a(f"s_mov_b64 {sr(SRD_R0,2)}, {sr(S_P+8,2)}"); a(f"s_mov_b32 s{SRD_R0+2}, {512*2752}")
        a(f"s_mov_b64 {sr(SRD_R1,2)}, {sr(S_P+10,2)}"); a(f"s_mov_b32 s{SRD_R1+2}, {512*2752}")
        a(f"v_lshrrev_b32 v{V_T2}, 3, v{V_T1}"); a(f"v_mul_u32_u24 v{V_T2}, 2752, v{V_T2}")
        a(f"v_and_b32 v{V_RS}, 0x70, v{V_L16}"); a(f"v_add_u32 v{V_T2}, v{V_T2}, v{V_RS}")
        a(f"s_lshl2_add_u32 s{T0}, s{S_XCD}, s{S_W}"); a(f"s_mul_i32 s{T0}, s{T0}, {16*2752}")
        a(f"s_lshl_b32 s{T0+1}, s{S_R}, 7"); a(f"s_add_u32 s{T0}, s{T0}, s{T0+1}")
        a(f"s_add_u32 s{T0+1}, s{T0}, {8*2752}")
        a(f"s_lshl_b32 s{T0+2}, s{S_W}, 11")
        for m, srd in enumerate((SRD_R0, SRD_R1)):
            for i in range(2):
                a(f"s_add_u32 m0, s{T0+2}, {G + m*8192 + i*1024}")
                a(f"buffer_load_dwordx4 v{V_T2}, {sr(srd,4)}, s{T0+i} offen lds", maybe=True)
        a(f"s_branch {Lj}")
        a.label(Lwd)
        a(f"s_sub_u32 s{T0}, s{S_R}, 22"); a(f"s_lshl3_add_u32 s{T0}, s{T0}, s{S_XCD}")
        a(f"s_cmp_lt_u32 s{T0}, 32")
        a(f"s_cselect_b64 {sr(SRD_R0,2)}, {sr(S_P+4,2)}, {sr(S_P+12,2)}")
        a(f"s_mov_b64 {sr(SRD_R1,2)}, {sr(S_P+12,2)}"); a(f"s_mov_b32 s{SRD_R1+2}, {1376*1024}")
        a(f"s_cselect_b32 s{SRD_R0+2}, {512*1024}, s{SRD_R1+2}")
        a(f"s_cselect_b32 s{T0+1}, 0, 32")
        a(f"s_sub_u32 s{T0+1}, s{T0}, s{T0+1}"); a(f"s_lshl_b32 s{T0+1}, s{T0+1}, 14")
        a(f"v_lshrrev_b32 v{V_T2}, 4, v{V_T1}"); a(f"v_lshlrev_b32 v{V_T2}, 10, v{V_T2}")
        a(f"v_and_b32 v{V_RS}, 0xf0, v{V_L16}"); a(f"v_add_u32 v{V_T2}, v{V_T2}, v{V_RS}")
        a(f"s_lshl_b32 s{T0+2}, s{S_W}, 8"); a(f"v_add_u32 v{V_T2}, s{T0+2}, v{V_T2}")
        for i in range(4):
            a(f"s_add_u32 m0, s{S_W4K}, {G + i*1024}")
            a(f"buffer_load_dwordx4 v{V_T2}, {sr(SRD_R0,4)}, s{T0+1} offen lds", maybe=True)
            a(f"s_add_u32 s{T0+1}, s{T0+1}, 4096")
        a(f"s_cmp_ge_u32 s{T0}, 38")
        a(f"s_cbranch_scc1 {Lj}")
        a(f"s_add_u32 s{T0+1}, s{T0}, 48"); a(f"s_lshl_b32 s{T0+1}, s{T0+1}, 14")
        for i in range(4):
            a(f"s_add_u32 m0, s{S_W4K}, {G + 16384 + i*1024}")
            t = a(f"buffer_load_dwordx4 v{V_T2}, {sr(SRD_R1,4)}, s{T0+1} offen lds", maybe=True)
            a(f"s_add_u32 s{T0+1}, s{T0+1}, 4096")
        a.label(Lj)
        return t

    def tr_lane(self, dst, tmp, pitch, hrows, cbstep):
        a = self.a
        a(f"v_bfe_u32 v{dst}, v{V_L16}, 6, 2")
        a(f"v_lshrrev_b32 v{tmp}, 9, v{V_L16}")
        a(f"v_mad_u32_u24 v{dst}, v{tmp}, {hrows}, v{dst}")
        a(f"v_mul_u32_u24 v{dst}, {pitch}, v{dst}")
        a(f"v_bfe_u32 v{tmp}, v{V_L16}, 8, 1")
        a(f"v_mul_u32_u24 v{tmp}, {cbstep}, v{tmp}")
        a(f"v_add_u32 v{dst}, v{dst}, v{tmp}")
        a(f"v_bfe_u32 v{tmp}, v{V_L16}, 4, 2")
        a(f"v_lshl_add_u32 v{dst}, v{tmp}, 3, v{dst}")

    def repack_process(self, ones):
        a = self.a
        Lwd = a.newlabel("rq_wd"); Lj = a.newlabel("rq_j")
        F = V_ACC; ACC = V_ACC + 16
        SF0, SF1 = TA + 8, TA + 9
        a(f"s_cmp_ge_u32 s{S_R}, 22")
        a(f"s_cbranch_scc1 {Lwd}")
        self.tr_lane(V_T1, V_T2, 128, 4, 8192)
        a(f"s_lshl_b32 s{T0}, s{S_W}, 5"); a(f"v_add_u32 v{V_T1}, s{T0}, v{V_T1}")
        for ks in range(4):
            for rho in range(2):
                a(f"ds_read_b64_tr_b16 {vr(F+4*ks+2*rho,2)}, v{V_T1} offset:{G + (16*ks+8*rho)*128}")
        a(f"s_lshl2_add_u32 s{T0}, s{S_R}, s{S_W}")
        a(f"s_mul_i32 s{T0+1}, s{T0}, 52429"); a(f"s_lshr_b32 s{T0+1}, s{T0+1}, 18")
        a(f"s_mul_i32 s{T0+2}, s{T0+1}, 5"); a(f"s_sub_u32 s{T0+2}, s{T0}, s{T0+2}")
        a(f"s_sub_u32 s{T0+3}, s{T0}, 80")
        a(f"s_cmp_lt_u32 s{T0}, 80")
        a(f"s_cselect_b32 s{T0+1}, s{T0+1}, s{T0+3}")
        a(f"s_cselect_b32 s{T0+2}, s{T0+2}, 165")
        a(f"s_cselect_b32 s{T0+3}, 5, 1"); a(f"s_lshl_b32 s{T0+3}, s{T0+3}, 10")
        a(f"s_mul_i32 s{T0+1}, s{T0+1}, {PGU_P}"); a(f"s_lshl_b32 s{T0+2}, s{T0+2}, 10")
        a(f"s_add_u32 s{T0+1}, s{T0+1}, s{T0+2}"); a(f"s_add_u32 s{T0+1}, s{T0+1}, {PGU}")
        a(f"s_cmp_lt_u32 s{T0}, 86")
        a(f"s_cselect_b32 s{T0+1}, s{T0+1}, {DUMMY}")
        a(f"s_lshl_b32 s3, s{T0+3}, 5"); a(f"s_add_u32 s3, s3, s{T0+1}")
        a(f"s_lshl_b32 s{T0+2}, s{S_XCD}, 7"); a(f"s_add_u32 s3, s3, s{T0+2}")
        a(f"s_lshl_b32 s{T0+2}, s{S_XCD}, 2"); a(f"s_mul_i32 s{T0+2}, s{T0+2}, s{T0+3}")
        a(f"s_add_u32 s{T0+1}, s{T0+1}, s{T0+2}")
        for ks in range(4):
            self.mfma(ACC, ones, vr(F + 4 * ks, 4), "0" if ks == 0 else None)
            a(f"buffer_store_dwordx4 {vr(F+4*ks,4)}, v{V_L16}, {sr(SRD_WS,4)}, s{T0+1} offen sc1")
            a(f"s_add_u32 s{T0+1}, s{T0+1}, s{T0+3}")
        a(f"s_lshl3_add_u32 s{SF0}, s{S_R}, s{S_XCD}"); a(f"s_lshl_b32 s{SF0}, s{SF0}, 7")
        a(f"s_lshl2_add_u32 s{SF0}, s{S_W}, s{SF0}"); a(f"s_add_u32 s{SF0}, s{SF0}, {FRP_GU}")
        a(f"s_mov_b32 s{SF1}, s{SF0}")
        a(f"v_lshrrev_b32 v{V_T1}, 2, v{V_L16}")
        a(f"v_cvt_pk_bf16_f32 v{V_T2}, v{ACC}, v{ACC}")
        a(f"v_lshlrev_b32 v{V_T2}, 16, v{V_T2}")
        a(f"v_sub_f32 v{V_T2}, v{ACC}, v{V_T2}")
        a(f"v_cvt_pk_bf16_f32 v{V_T2}, v{ACC}, v{V_T2}")
        a("s_mov_b32 exec_hi, 0")
        a(f"buffer_store_dword v{V_T2}, v{V_T1}, {sr(SRD_WS,4)}, s3 offen sc1", maybe=True)
        self.full_exec()
        a(f"s_branch {Lj}")
        a.label(Lwd)
        self.tr_lane(V_T1, V_T2, 256, 4, 32)
        a(f"v_add_u32 v{V_T1}, s{S_W4K}, v{V_T1}")
        a(f"s_sub_u32 s{T0}, s{S_R}, 22"); a(f"s_lshl3_add_u32 s{T0}, s{T0}, s{S_XCD}")
        a(f"s_lshl_b32 s{SF0}, s{T0}, 7"); a(f"s_lshl2_add_u32 s{SF0}, s{S_W}, s{SF0}"); a(f"s_add_u32 s{SF0}, s{SF0}, {FRP_WD}")
        a(f"s_mov_b32 s{SF1}, s{SF0}")
        a(f"s_mul_i32 s{T0+1}, s{S_W}, {2*PWD_P}"); a(f"s_lshl_b32 s{T0+2}, s{T0}, 11")
        a(f"s_add_u32 s{T0+1}, s{T0+1}, s{T0+2}"); a(f"s_add_u32 s{T0+1}, s{T0+1}, {PWD}")
        a(f"s_add_u32 s{T0+2}, s{T0+1}, {PWD_P}")
        for unit in range(2):
            if unit == 1:
                a(f"s_cmp_ge_u32 s{T0}, 38"); a(f"s_cbranch_scc1 {Lj}")
                a(f"s_add_u32 s{T0+1}, s{T0+1}, {80*2048}"); a(f"s_add_u32 s{T0+2}, s{T0+2}, {80*2048}")
                a(f"s_add_u32 s{SF1}, s{SF0}, {80*128}")
            FF = F + 16 * unit
            for i in range(4):
                for rho in range(2):
                    a(f"ds_read_b64_tr_b16 {vr(FF+4*i+2*rho,2)}, v{V_T1} offset:{G + unit*16384 + 8*rho*256 + 64*i}")
            for i in range(4):
                a(f"buffer_store_dwordx4 {vr(FF+4*i,4)}, v{V_L16}, {sr(SRD_WS,4)}, s{T0+1+(i>>1)} offen offset:{(i&1)*1024} sc1", maybe=True)
        a.label(Lj)
        a.nop(2)

    def wq_read(self, dst, k, blk, regs, rho_off):
        base = regs[k >> 4]
        off = (k & 15) * 3072 + blk * 1024
        d = int(dst[1]); f = ar if dst[0] == "a" else vr
        self.a(f"ds_read_b64_tr_b16 {f(d,2)}, v{base} offset:{off}")
        self.a(f"ds_read_b64_tr_b16 {f(d+2,2)}, v{base} offset:{off + rho_off}")

    def kv_epilogue_ops(self, L):
        a = self.a
        aK, aV = V_ACC, V_ACC + 16
        RV = V_ACC + 80
        AV = V_ACC + 76
        ops = []
        ops.append(lambda: a(f"v_lshrrev_b32 v{V_T1}, 2, v{V_L16}"))
        ops.append(lambda: a(f"v_add_u32 v{V_T1}, s{S_W4K}, v{V_T1}"))
        ops.append(lambda: a(f"ds_write_b32 v{V_T1}, v{V_RS} offset:{G + 49152 + 512}"))
        ops.append(lambda: a(f"v_lshrrev_b32 v{V_T1}, 9, v{V_L16}"))
        ops.append(lambda: a(f"v_lshl_add_u32 v{V_T1}, v{V_T1}, 4, s{S_W4K}"))
        for q in range(4):
            ops.append(lambda q=q: a(f"ds_read_b128 {vr(RV+4*q,4)}, v{V_T1} offset:{G + 49152 + 512 + 32*q}"))
        for i in (1, 2, 3):
            ops.append(lambda i=i: a(f"v_mov_b32 v{V_AUG+i}, 0"))
        for i in (0, 2, 3):
            ops.append(lambda i=i: a(f"v_mov_b32 v{AV+i}, 0"))
        ops.append(lambda: a(f"v_mov_b32 v{AV+1}, v{V_AUG}"))
        pre = ops
        ops = []
        ops.append(lambda: self.mfma(aK, vr(V_CS, 4), vr(V_AUG, 4)))
        ops.append(lambda: self.mfma(aV, vr(AV, 4), vr(V_CS, 4)))
        mid = ops
        ops = []
        ops.append(lambda: a(f"v_mov_b32 v{V_AUG+2}, v{V_AUG}"))
        ops.append(lambda: a(f"v_mov_b32 v{V_AUG}, 0"))
        ops.append(lambda: a(f"s_lshl_b32 s{T0}, s{S_C}, 6"))
        ops.append(lambda: a(f"s_add_u32 s{T0}, s{T0}, s{S_TBW}"))
        ops.append(lambda: a(f"s_lshl_b32 s{T0}, s{T0}, 12"))
        ops.append(lambda: a(f"s_add_u32 s{T0}, s{T0}, {KV + L*0x400000}"))
        ops.append(lambda: a(f"v_add_u32 v{V_T1}, s{S_W4K}, v{V_L16}"))
        self.kv_toks = []
        for part, acc in enumerate((aK, aV)):
            for hf in range(2):
                for i in range(8):
                    r = 8 * hf + i
                    sc = V_RS if part == 0 else RV + r
                    ops.append(lambda r=r, sc=sc, acc=acc: a(f"v_mul_f32 v{acc+r}, v{sc}, v{acc+r}"))
                for i in range(4):
                    ops.append(lambda i=i, hf=hf, acc=acc: a(f"v_cvt_pk_bf16_f32 v{acc+8*hf+i}, v{acc+8*hf+2*i}, v{acc+8*hf+2*i+1}"))
                o = (2 * part + hf) * 1024
                ops.append(lambda o=o, hf=hf, acc=acc: self.kv_toks.append(
                    a(f"buffer_store_dwordx4 {vr(acc+8*hf,4)}, v{V_L16}, {sr(SRD_WS,4)}, s{T0} offen offset:{o} sc1")))
                ops.append(lambda o=o, hf=hf, acc=acc: a(f"ds_write_b128 v{V_T1}, {vr(acc+8*hf,4)} offset:{G + 32768 + o}"))
        return pre, mid, ops

    def mask_ops(self):
        a = self.a
        MD, MF = V_ACC + 48, V_ACC + 64
        t = 30
        ops = []
        ops.append(lambda: a(f"v_bfe_u32 v{t}, v{V_L16}, 4, 5"))
        ops.append(lambda: a(f"v_lshrrev_b32 v{t+1}, 9, v{V_L16}"))
        ops.append(lambda: a(f"v_lshlrev_b32 v{t+1}, 2, v{t+1}"))
        ops.append(lambda: a(f"v_sub_u32 v{t}, v{t}, v{t+1}"))
        ops.append(lambda: a(f"v_mov_b32 v{t+1}, {NEG_BIG:#x}"))
        for r in range(16):
            key = 8 * (r >> 2) + (r & 3)
            s = TA + 10 + 2 * (r % 3)
            ops.append(lambda key=key, s=s: a(f"v_cmp_le_i32 {sr(s,2)}, {key}, v{t}"))
            if r >= 1:
                q = r - 1; sq = TA + 10 + 2 * (q % 3)
                ops.append(lambda q=q, sq=sq: a(f"v_cndmask_b32 v{MD+q}, v{t+1}, 0, {sr(sq,2)}"))
                ops.append(lambda q=q, sq=sq: a(f"v_cndmask_b32 v{MF+q}, 0, v{t+1}, {sr(sq,2)}"))
        sq = TA + 10 + 2 * (15 % 3)
        ops.append(lambda: a(f"v_cndmask_b32 v{MD+15}, v{t+1}, 0, {sr(sq,2)}"))
        ops.append(lambda: a(f"v_cndmask_b32 v{MF+15}, 0, v{t+1}, {sr(sq,2)}"))
        return ops

    def q_pass(self, L, trregs, rho_off, fillers, per):
        a = self.a
        aQ = V_ACC + 32
        slots = [("a", A_STG + 4 * i) for i in range(4)]
        for k in range(4):
            self.wq_read(slots[k], k, 0, trregs, rho_off)
        for k in range(32):
            self.mfma(aQ, ar(slots[k % 4][1], 4), vr(V_X + 4 * k, 4), "0" if k == 0 else None)
            if k + 4 < 32:
                self.wq_read(slots[k % 4], k + 4, 0, trregs, rho_off)
            for _ in range(per):
                if fillers: fillers.pop(0)()
        while fillers: fillers.pop(0)()
        self.mfma(aQ, vr(V_CS, 4), vr(V_AUG, 4))
        a(f"s_lshl4_add_u32 s{T0}, s{S_TBW}, s{S_C}"); a(f"s_lshl_b32 s{T0}, s{T0}, 7")
        a(f"s_add_u32 s{T0}, s{T0}, {FKV + L*0x20000}")
        a.wait(*self.kv_toks)
        self.set_flag(f"s{T0}", "sc1")
        a(f"v_mul_f32 v{V_RS}, {QSCALE:#x}, v{V_RS}")
        for r in range(16):
            a(f"v_mul_f32 v{aQ+r}, v{V_RS}, v{aQ+r}")
        for i in range(8):
            a(f"v_cvt_pk_bf16_f32 v{aQ+i}, v{aQ+2*i}, v{aQ+2*i+1}")

    def qkv1(self):
        a = self.a
        aK, aV = V_ACC, V_ACC + 16
        aCS, aSum, aGr = V_ACC + 48, V_ACC + 64, V_ACC + 80
        tmp = V_ACC + 32
        vX, vWQ, vW0, vW1, vR = tmp, tmp + 1, tmp + 2, tmp + 3, tmp + 4
        vCa, vCb = tmp + 8, tmp + 9
        ones = vr(tmp + 12, 4)
        vTa, vTb = 28, 29
        rp_tok = self.repack_loads()
        self.lane(V_T1)
        a(f"v_lshrrev_b32 v{vX}, 3, v{V_T1}"); a(f"v_lshlrev_b32 v{vX}, 10, v{vX}")
        a(f"v_and_b32 v{V_T2}, 0x70, v{V_L16}"); a(f"v_add_u32 v{vX}, v{vX}, v{V_T2}")
        a(f"v_lshrrev_b32 v{vWQ}, 2, v{V_T1}"); a(f"v_mul_u32_u24 v{vWQ}, 3072, v{vWQ}")
        a(f"v_and_b32 v{V_T2}, 0x30, v{V_L16}"); a(f"s_lshl_b32 s{T0}, s{S_C}, 6")
        a(f"v_add3_u32 v{vWQ}, v{vWQ}, v{V_T2}, s{T0}")
        sX = TA
        sWs, sWm = TA + 6, TA + 7
        a(f"s_lshl_b32 s{sX}, s{S_TBW}, 15")
        for i in range(1, 4):
            a(f"s_add_u32 s{sX+i}, s{sX}, {8192*i}")
        a(f"s_mul_i32 s{sWs}, s{S_W}, {16*3072}")
        a(f"s_mul_i32 s{sWm}, s{S_W}, 3072"); a(f"s_add_u32 s{sWm}, s{sWm}, {WQ}")
        wtok = {}

        def chunk_ops(j):
            ops = []
            for i in range(4):
                ops.append(lambda i=i: a(f"buffer_load_dwordx4 {vr(V_X+16*j+4*i,4)}, v{vX}, {sr(SRD_X,4)}, s{sX+i} offen offset:{128*j}"))

            def w(b):
                if b == 0:
                    a(f"s_add_u32 m0, s{sWm}, {j*4*3072}")
                wtok[j] = a(f"buffer_load_dwordx4 v{vWQ}, {sr(SRD_WQ,4)}, s{sWs} offen offset:{1024*b} lds")
                if b == 2:
                    a(f"s_add_u32 s{sWs}, s{sWs}, {64*3072}")
            for b in range(3):
                ops.append(lambda b=b: w(b))
            return ops
        AHEAD = 3
        for j in range(AHEAD):
            for op in chunk_ops(j): op()
        a(f"v_lshrrev_b32 v{V_T2}, 4, v{V_T1}"); a(f"v_xor_b32 v{V_T2}, v{V_T1}, v{V_T2}")
        a(f"v_lshl_add_u32 v{vW0}, v{V_T2}, 4, s{S_W4K}")
        a(f"v_xor_b32 v{vW1}, 64, v{vW0}")
        a(f"v_bfe_u32 v{V_T2}, v{V_T1}, 1, 3"); a(f"v_lshrrev_b32 v{V_RS}, 5, v{V_T1}"); a(f"v_xor_b32 v{V_T2}, v{V_T2}, v{V_RS}")
        a(f"v_and_b32 v{V_RS}, 31, v{V_T1}"); a(f"v_lshlrev_b32 v{V_RS}, 7, v{V_RS}")
        a(f"v_lshl_add_u32 v{vR}, v{V_T2}, 4, v{V_RS}"); a(f"v_add_u32 v{vR}, s{S_W4K}, v{vR}")
        for s in range(1, 4):
            a(f"v_xor_b32 v{vR+s}, {32*s}, v{vR}")
        self.tr_lane(vTa, V_T2, 64, 8, 32)
        a(f"v_add_u32 v{vTa}, {WQ}, v{vTa}"); a(f"v_add_u32 v{vTb}, 49152, v{vTa}")
        a(f"s_min_u32 s{T0}, s{S_W}, 2"); a(f"s_lshl_b32 s{T0}, s{T0}, 10")
        a(f"v_add_u32 v{vCa}, s{T0}, v{vTa}"); a(f"v_add_u32 v{vCb}, s{T0}, v{vTb}")
        for i in range(4):
            a(f"v_mov_b32 v{tmp+12+i}, {ONES:#x}")
        a(f"s_and_b32 s{S_N}, s{S_N}, 0xfffffff0"); a(f"s_add_u32 s{S_N}, s{S_N}, 0x9e3779b0")
        a(f"s_or_b32 s{S_HELLO}, s{S_HELLO}, s{S_N}")
        Lh = a.newlabel("hello")
        a(f"s_cmp_lg_u32 s{S_W}, 0"); a(f"s_cbranch_scc1 {Lh}")
        a(f"s_lshl_b32 s{T0}, s2, 7"); a(f"s_add_u32 s{T0}, s{T0}, {HELLO}")
        a(f"v_mov_b32 v{V_T2}, s{S_HELLO}")
        a("s_mov_b64 exec, 1")
        a(f"buffer_store_dword v{V_T2}, v{V_L16}, {sr(SRD_WS,4)}, s{T0} offen sc1", maybe=True)
        self.full_exec()
        a.label(Lh)
        a.wait(rp_tok)
        a("s_barrier")
        self.stamp("rp_in")
        self.repack_process(ones)
        self.stamp("rp_out")

        def open_chunk(j):
            for i in range(4):
                a(f"ds_write_b128 v{vW1 if i & 1 else vW0}, {vr(V_X+16*j+4*i,4)} offset:{G + 32768 + 1024*i}")
            for s in range(4):
                a(f"ds_read_b128 {vr(V_X+16*j+4*s,4)}, v{vR+s} offset:{G + 32768}")
            a.wait(wtok[j])
            a("s_barrier")
            if j == AHEAD:
                self.set_flag(f"s{TA+8}", "sc1")
                self.set_flag(f"s{TA+9}", "sc1")
        slots = [("a", A_STG + 4 * i) for i in range(4)]
        nfr = 96

        def rd(n):
            k, b = divmod(n, 3)
            if b == 0 and k % 4 == 0:
                open_chunk(k // 4)
            if b == 2:
                self.wq_read(slots[n % 4], k, 0, (vCa, vCb), 256)
            else:
                self.wq_read(slots[n % 4], k, 1 + b, (vTa, vTb), 256)
        for n in range(4): rd(n)
        loads = []
        for n in range(nfr):
            k, b = divmod(n, 3)
            if b == 0 and k % 4 == 0 and k // 4 + AHEAD < 8:
                loads += chunk_ops(k // 4 + AHEAD)
            W = ar(slots[n % 4][1], 4); X = vr(V_X + 4 * k, 4)
            c0 = "0" if k == 0 else None
            if b == 0:
                self.mfma(aK, W, X, c0)
            elif b == 1:
                self.mfma(aV, X, W, c0)
            else:
                self.mfma(aCS, ones, W, c0)
            if loads: loads.pop(0)()
            if n + 4 < nfr: rd(n + 4)
            if b == 0:
                self.mfma(aSum, ones, X, c0)
            elif b == 1:
                self.mfma(aGr, X, X, c0)
        self.stamp("kv1")
        ops = []
        ops.append(lambda: a(f"v_lshrrev_b32 v{V_T1}, 2, v{V_L16}"))
        ops.append(lambda: a(f"v_add_u32 v30, s{S_W4K}, v{V_T1}"))
        ops.append(lambda: a(f"v_cvt_pk_bf16_f32 v{V_T2}, v{aCS}, v{aCS}"))
        ops.append(lambda: a(f"v_lshlrev_b32 v{V_T2}, 16, v{V_T2}"))
        ops.append(lambda: a(f"v_sub_f32 v{V_T2}, v{aCS}, v{V_T2}"))
        ops.append(lambda: a(f"v_cvt_pk_bf16_f32 v{V_T2}, v{aCS}, v{V_T2}"))
        ops.append(lambda: a(f"v_cmp_gt_u32 vcc, 128, v{V_T1}"))
        ops.append(lambda: a(f"v_cndmask_b32 v{V_T2}, 0, v{V_T2}, vcc"))

        def cs_x():
            t = a(f"ds_write_b32 v30, v{V_T2} offset:{G + 49152}")
            a.wait(t)
            a("s_barrier")
            a(f"ds_read_b32 v{V_CS}, v{V_T1} offset:{G + 49152 + 4096}")
            a(f"ds_read_b32 v{V_CS+1}, v{V_T1} offset:{G + 49152 + 8192}")
            a(f"ds_read_b32 v{V_CS+2}, v{V_T1} offset:{G + 49152}")
        ops.append(cs_x)
        ops.append(lambda: a(f"v_mov_b32 v{V_CS+3}, 0"))
        ops.append(lambda: a(f"v_bfe_u32 v30, v{V_L16}, 4, 5"))
        ops.append(lambda: a(f"v_lshrrev_b32 v31, 9, v{V_L16}"))
        ops.append(lambda: a(f"v_lshlrev_b32 v31, 2, v31"))
        ops.append(lambda: a(f"v_sub_u32 v30, v30, v31"))
        ops.append(lambda: a(f"v_mov_b32 v31, 0"))
        for r in range(18):
            if r < 16:
                key = 8 * (r >> 2) + (r & 3); s = TA + 10 + 2 * (r % 3)
                ops.append(lambda key=key, s=s: a(f"v_cmp_eq_u32 {sr(s,2)}, {key}, v30"))
            if r >= 2:
                q = r - 2; sq = TA + 10 + 2 * (q % 3)
                ops.append(lambda q=q, sq=sq: a(f"v_cndmask_b32 v31, v31, v{aGr+q}, {sr(sq,2)}"))
        ops.append(lambda: a(f"v_mov_b32 v30, v31"))
        ops.append(lambda: a(f"v_permlane32_swap_b32 v30, v31"))
        ops.append(lambda: a(f"v_add_f32 v31, v30, v31"))
        ops.append(lambda: a(f"v_mov_b32 v30, v{aSum}"))
        ops += self.stats_finish(30, 31)
        pre, mid, post = self.kv_epilogue_ops(0)
        ops += pre + mid + post + self.mask_ops()
        self.q_pass(0, (vTa, vTb), 256, ops, 7)
        self.stamp("q1")

    def qkv2(self):
        a = self.a
        aK, aV = V_ACC, V_ACC + 16
        vTa, vTb = 28, 29
        ST = V_ACC + 48
        a(f"v_lshrrev_b32 v{V_T1}, 2, v{V_L16}")
        a(f"s_add_u32 s{T0}, s{S_FLW}, {3*128}")
        self.poll("0xffff", f"s{T0}")
        self.full_exec()
        self.stamp("x2poll")
        sX = TA
        a(f"s_mov_b32 s{sX}, s{S_XBW}")
        a(f"s_add_u32 s{sX+1}, s{S_XBW}, 32768")

        def xl(k):
            a(f"buffer_load_dwordx4 {vr(V_X+4*k,4)}, v{V_L16}, {sr(SRD_WS,4)}, s{sX} offen offset:{(k&3)*1024} sc1")
            if k & 3 == 3: a(f"s_add_u32 s{sX}, s{sX}, 4096")
        loads = [lambda k=k: xl(k) for k in range(32)]
        stl = [lambda q=q: a(f"buffer_load_dwordx4 {vr(ST+4*q,4)}, v{V_L16}, {sr(SRD_WS,4)}, s{sX+1} offen offset:{q*1024} sc1") for q in range(4)]
        loads = loads[:12] + stl + loads[12:]
        for _ in range(8): loads.pop(0)()
        self.tr_lane(vTa, V_T2, 64, 4, 32)
        a(f"v_add_u32 v{vTa}, {WQ}, v{vTa}"); a(f"v_add_u32 v{vTb}, 49152, v{vTa}")
        slots = [("a", A_STG + 4 * i) for i in range(4)]
        pre, mid, post = self.kv_epilogue_ops(1)
        fill = self.stats_from_partials(ST) + pre
        rd = lambda n: self.wq_read(slots[n % 4], n >> 1, 1 + (n & 1), (vTa, vTb), 512)
        for n in range(4): rd(n)
        for n in range(64):
            k, b = divmod(n, 2)
            W = ar(slots[n % 4][1], 4); X = vr(V_X + 4 * k, 4)
            c0 = "0" if k == 0 else None
            if b == 0: self.mfma(aK, W, X, c0)
            else: self.mfma(aV, X, W, c0)
            if b == 0 and loads: loads.pop(0)()
            if n + 4 < 64: rd(n + 4)
            if n >= 32:
                for _ in range(2):
                    if fill: fill.pop(0)()
        while fill: fill.pop(0)()
        self.stamp("kv2")
        for op in mid: op()
        self.q_pass(1, (vTa, vTb), 512, post + self.mask_ops(), 5)
        self.stamp("q2")

    def side_work(self):
        a = self.a
        self.lane(V_T1)
        a(f"v_and_b32 v{V_T2}, 31, v{V_T1}"); a(f"v_lshlrev_b32 v{V_T2}, 10, v{V_T2}")
        a(f"v_lshrrev_b32 v{V_T1}, 5, v{V_T1}"); a(f"v_lshl_add_u32 v{V_T2}, v{V_T1}, 4, v{V_T2}")
        a(f"s_lshl_b32 s{T0}, s{S_TBS}, 15"); a(f"s_lshl_b32 s{T0+1}, s{S_FB}, 6"); a(f"s_add_u32 s{T0}, s{T0}, s{T0+1}")
        for s in range(2):
            a(f"buffer_load_dwordx4 {vr(V_X+4*s,4)}, v{V_T2}, {sr(SRD_X,4)}, s{T0} offen offset:{32*s}")
        self.lane(V_T1)
        a(f"v_lshlrev_b32 v{V_T2}, 7, v{V_T1}")
        a(f"s_mul_i32 s{T0}, s{S_C}, 5120"); a(f"s_add_u32 s{T0}, s{T0}, s{S_HBW}")
        a(f"s_min_u32 s{T0+1}, s{S_C}, 5"); a(f"s_add_u32 s{T0+1}, s{T0+1}, 75"); a(f"s_lshl_b32 s{T0+1}, s{T0+1}, 10")
        a(f"s_add_u32 s{T0+1}, s{T0+1}, s{S_HBW}")
        a(f"s_mul_i32 s{T0+2}, s{S_TBS}, {XB_P}"); a(f"s_lshl_b32 s{T0+3}, s{S_FB}, 11"); a(f"s_add_u32 s{T0+3}, s{T0+3}, s{T0+2}")
        a(f"s_add_u32 s{T0+3}, s{T0+3}, {XB - 48*128}")
        a(f"v_mov_b32 v40, s{T0}"); a(f"v_mov_b32 v41, s{T0+1}"); a(f"v_mov_b32 v42, s{T0+3}")
        a(f"v_cmp_gt_u32 vcc, 40, v{V_T1}"); a(f"v_cndmask_b32 v40, v41, v40, vcc")
        a(f"v_cmp_gt_u32 vcc, 48, v{V_T1}"); a(f"v_cndmask_b32 v40, v42, v40, vcc")
        a(f"v_add_u32 v40, v40, v{V_T2}")
        a(f"buffer_load_dword v41, v40, {sr(SRD_WS,4)}, 0 offen")
        a(f"s_lshl_b32 s{T0+3}, s{S_FB}, 8"); a(f"s_add_u32 s{T0+3}, s{T0+3}, s{T0+2}"); a(f"s_add_u32 s{T0+3}, s{T0+3}, {XB + 32768 - 8*128}")
        a(f"v_mov_b32 v42, s{S_FLW}"); a(f"v_mov_b32 v43, s{T0+3}")
        a(f"v_cmp_gt_u32 vcc, 8, v{V_T1}"); a(f"v_cndmask_b32 v42, v43, v42, vcc")
        a(f"v_add_u32 v42, v42, v{V_T2}")
        a("s_mov_b64 exec, 0x3ff")
        a(f"buffer_load_dword v43, v42, {sr(SRD_WS,4)}, 0 offen")
        self.full_exec()
        a(f"s_lshl_b32 s{T0}, s{S_W}, 3")
        a(f"s_mul_i32 s{T0+1}, s{S_W}, 20"); a(f"s_add_u32 s{T0+1}, s{T0+1}, 24")
        a(f"s_add_u32 s{T0+2}, s{S_W}, {32+80-28}")
        a(f"s_and_b32 s{T0+3}, s{S_W}, 1"); a(f"s_add_u32 s{T0+3}, s{T0+3}, {32+84-29}")
        a(f"v_mov_b32 v44, s{T0}"); a(f"v_mov_b32 v45, s{T0+1}"); a(f"v_mov_b32 v46, s{T0+2}"); a(f"v_mov_b32 v47, s{T0+3}")
        a(f"v_cmp_gt_u32 vcc, 8, v{V_T1}"); a(f"v_cndmask_b32 v44, v45, v44, vcc")
        a(f"v_cmp_gt_u32 vcc, 28, v{V_T1}"); a(f"v_cndmask_b32 v44, v46, v44, vcc")
        a(f"v_cmp_gt_u32 vcc, 29, v{V_T1}"); a(f"v_cndmask_b32 v44, v47, v44, vcc")
        a(f"v_add_u32 v44, v44, v{V_T1}"); a(f"v_lshlrev_b32 v{V_T1}, 7, v44")
        a(f"s_lshr_b32 s{T0}, s{S_FB}, 2"); a(f"s_lshl_b32 s{T0}, s{T0}, 2"); a(f"s_add_u32 s{T0}, s{T0}, {FRP_WD}")
        self.poll("0x3fffffff", f"s{T0}")
        self.full_exec()
        self.stamp("wdpoll")
        for s in range(2):
            a(f"v_permlane32_swap_b32 v{V_X+4*s}, v{V_X+4*s+2}")
            a(f"v_permlane32_swap_b32 v{V_X+4*s+1}, v{V_X+4*s+3}")
        for i in range(8):
            a(f"v_lshlrev_b32 v{V_OWN+2*i}, 16, v{V_X+i}")
            a(f"v_and_b32 v{V_OWN+2*i+1}, 0xffff0000, v{V_X+i}")
        self.lane(V_T1)
        a(f"v_lshrrev_b32 v40, 3, v{V_T1}")
        a(f"s_mul_i32 s{T0}, s{S_C}, 5"); a(f"v_add_u32 v41, s{T0}, v40")
        a(f"s_min_u32 s{T0+1}, s{S_C}, 5"); a(f"s_add_u32 s{T0+1}, s{T0+1}, 80"); a(f"v_mov_b32 v42, s{T0+1}")
        a(f"v_cmp_gt_u32 vcc, 5, v40"); a(f"v_cndmask_b32 v41, v42, v41, vcc")
        a(f"v_lshrrev_b32 v42, 2, v41"); a(f"v_lshlrev_b32 v42, 10, v42")
        a(f"v_and_b32 v41, 3, v41"); a(f"v_lshl_add_u32 v42, v41, 2, v42")
        a(f"v_and_b32 v41, 7, v{V_T1}"); a(f"v_lshl_add_u32 v{V_T1}, v41, 7, v42")
        a(f"s_mov_b32 s{T0}, {FRP_GU}")
        a(f"s_mov_b32 s{T0+2}, -1"); a(f"s_mov_b32 s{T0+3}, 0xffff")
        self.poll(sr(T0 + 2, 2), f"s{T0}")
        self.full_exec()
        a(f"v_lshlrev_b32 v{V_T1}, 6, v{V_L16}")
        a(f"s_and_b32 s{T0}, s2, 0x87"); a(f"s_lshl_b32 s{T0}, s{T0}, 7"); a(f"s_add_u32 s{T0}, s{T0}, {HELLO}")
        self.poll("0xffff", f"s{T0}", cmpmask=40)
        a(f"v_cmp_ne_u32 vcc, s{S_HELLO}, v{V_T2}")
        self.full_exec()
        self.stamp("hello")

    def w_loads(self):
        a = self.a
        sA, sB = TA + 2, TA + 3
        ops = []

        def setup(unit_expr):
            unit_expr()
            a(f"s_lshl_b32 s{sA}, s{sA}, 11")
            a(f"s_add_u32 s{sA}, s{sA}, s{TA+4}")
            a(f"s_xor_b32 s{sB}, s{sA}, 1024")

        def base():
            a(f"s_lshr_b32 s{TA+4}, s{S_FB}, 1"); a(f"s_mul_i32 s{TA+4}, s{TA+4}, {PWD_P}")
            a(f"s_and_b32 s{sA}, s{S_FB}, 1"); a(f"s_lshl_b32 s{sA}, s{sA}, 10")
            a(f"s_add_u32 s{TA+4}, s{TA+4}, s{sA}"); a(f"s_add_u32 s{TA+4}, s{TA+4}, {PWD}")

        def ld(areg, i, which, first=None):
            if first: first()
            a(f"buffer_load_dwordx4 {ar(areg,4)}, v{V_L16}, {sr(SRD_WS,4)}, s{sB if which else sA} offen offset:{(i&1)*2048} sc1")
            if (i & 1) and which:
                a(f"s_add_u32 s{sA}, s{sA}, 4096"); a(f"s_add_u32 s{sB}, s{sB}, 4096")

        def f_wo():
            base(); setup(lambda: a(f"s_lshl_b32 s{sA}, s{S_W}, 3"))

        def f_wd():
            setup(lambda: (a(f"s_mul_i32 s{sA}, s{S_W}, 20"), a(f"s_add_u32 s{sA}, s{sA}, 32")))

        def f_e0():
            setup(lambda: a(f"s_add_u32 s{sA}, s{S_W}, 112"))

        def f_e1():
            setup(lambda: a(f"s_add_u32 s{sA}, s{S_W}, 116"))
            a(f"s_cmp_lt_u32 s{S_W}, 2")
            a(f"s_cselect_b32 s{sA}, s{sA}, {OOB}"); a(f"s_cselect_b32 s{sB}, s{sB}, {OOB}")
        wo, wd = [], []
        for i in range(8):
            for which in range(2):
                wo.append(lambda i=i, which=which: ld(A_WO + 8 * i + 4 * which, i, which, f_wo if (i, which) == (0, 0) else None))
        for i in range(20):
            for which in range(2):
                wd.append(lambda i=i, which=which: ld(A_WD + 8 * i + 4 * which, i, which, f_wd if (i, which) == (0, 0) else None))
        for e, f in enumerate((f_e0, f_e1)):
            for which in range(2):
                wd.append(lambda e=e, which=which, f=f: ld(A_WD + 160 + 8 * e + 4 * which, 0, which, f if which == 0 else None))
        return wo, wd

    def ring_slot(self, n):
        s, i = divmod(n, 8)
        quarter = (3 + (s >> 1)) & 3
        return G + 16384 * quarter + 4096 * (i >> 1) + 2048 * (s & 1) + 1024 * (i & 1)

    def ring_fill_ops(self, s):
        a = self.a
        sG = TA + 5

        def f(i):
            if i == 0:
                if s == 0:
                    a(f"s_mul_i32 s{sG}, s{S_C}, {PGU_P}"); a(f"s_lshl_b32 s3, s{S_W}, 11")
                    a(f"s_add_u32 s{sG}, s{sG}, s3"); a(f"s_add_u32 s{sG}, s{sG}, {PGU}")
                a(f"s_add_u32 m0, s{S_W4K}, {self.ring_slot(8*s)}")
            self.ring_tok[s] = a(f"buffer_load_dwordx4 v{V_L16}, {sr(SRD_WS,4)}, s{sG} offen offset:{1024*i} sc1 lds")
            if i == 1:
                a(f"s_add_u32 s{sG}, s{sG}, 8192")
        return [lambda: f(0), lambda: f(1)]

    def attention(self, L, sc, bg):
        a = self.a
        Q = V_ACC + 32
        MD, MF = V_ACC + 48, V_ACC + 64
        S = [V_X, V_X + 16]
        O = [V_X + 32, V_X + 48]
        P = V_X + 64
        Kr = [V_X + 72, V_X + 76]
        Vr = [V_X + 80, V_X + 88]
        vA = 30
        sNB = TA
        for i in range(16):
            a(f"v_mov_b32 v{Vr[0]+i}, {ONES:#x}")
        Lno = a.newlabel("nohalo"); L1 = a.newlabel("halo1")
        a(f"s_cmp_eq_u32 s{S_G}, 0"); a(f"s_cbranch_scc1 {Lno}")
        a(f"v_lshlrev_b32 v{V_T1}, 9, v{V_L16}")
        a(f"s_lshl4_add_u32 s{T0}, s{S_TBW}, s{S_C}"); a(f"s_lshl_b32 s{T0}, s{T0}, 7")
        a(f"s_add_u32 s{T0}, s{T0}, {FKV + L*0x20000 - 8*16*128}")
        a(f"s_cmp_eq_u32 s{S_G}, 1"); a(f"s_cselect_b32 s{T0+2}, 2, 3"); a(f"s_mov_b32 s{T0+3}, 0")
        self.poll(sr(T0 + 2, 2), f"s{T0}")
        self.full_exec()
        a(f"s_lshl_b32 s{T0}, s{S_C}, 6"); a(f"s_add_u32 s{T0}, s{T0}, s{S_TBW}"); a(f"s_lshl_b32 s{T0}, s{T0}, 12")
        a(f"s_add_u32 s{T0}, s{T0}, {KV + L*0x400000 - 4*4096}")
        a(f"s_add_u32 m0, s{S_W4K}, {G + 16384}")
        for i in range(4):
            a(f"buffer_load_dwordx4 v{V_L16}, {sr(SRD_WS,4)}, s{T0} offen offset:{1024*i} sc1 lds", maybe=True)
        a(f"s_cmp_eq_u32 s{S_G}, 1"); a(f"s_cbranch_scc1 {Lno}")
        a(f"s_sub_u32 s{T0}, s{T0}, {4*4096}")
        a(f"s_add_u32 m0, s{S_W4K}, {G}")
        for i in range(4):
            a(f"buffer_load_dwordx4 v{V_L16}, {sr(SRD_WS,4)}, s{T0} offen offset:{1024*i} sc1 lds", maybe=True)
        a.label(Lno)
        a(f"v_add_u32 v{vA}, s{S_W4K}, v{V_L16}")
        a(f"s_min_u32 s{sNB}, s{S_TBW}, 8")
        a.drain(vm=True, lg=True, force=True)
        a("s_barrier")
        self.stamp(f"halo{L}")
        NT = 18
        off = lambda i: G + (8 - (i >> 1)) * 4096

        def rdK(i):
            a(f"ds_read_b128 {vr(Kr[i&1],4)}, v{vA} offset:{off(i) + (i&1)*1024}")

        def rdV(i):
            a(f"s_mov_b64 exec, {sr(S_E1 if i & 1 else S_E0, 2)}")
            a(f"ds_read_b128 {vr(Vr[i&1],4)}, v{vA} offset:{off(i) + 2048}")
            a(f"ds_read_b128 {vr(Vr[i&1]+4,4)}, v{vA} offset:{off(i) + 3072}")
            self.full_exec()

        def qk(i):
            c = vr(MD, 16) if i < 2 else (vr(MF, 16) if i >= 16 else "0")
            self.mfma(S[i & 1], vr(Kr[i & 1], 4), vr(Q + 4 * (i & 1), 4), c)

        def pv(i, s):
            self.mfma(O[i & 1], vr(Vr[i & 1] + 4 * s, 4), vr(P + 4 * s, 4), "0" if (i < 2 and s == 0) else None)
        Ltail = a.newlabel("atail")
        rdK(0); rdK(1); rdV(0); rdV(1)
        qk(0)
        rdK(2)
        for i in range(NT):
            s = S[i & 1]
            ex = lambda r: a(f"v_exp_f32 v{s+r}, v{s+r}")
            cv = lambda j: a(f"v_cvt_pk_bf16_f32 v{P+j}, v{s+2*j}, v{s+2*j+1}")
            ex(0); ex(1)
            if i >= 1: pv(i - 1, 1)
            if i >= 1 and i + 1 < NT: rdV(i + 1)
            ex(2); cv(0); ex(3); ex(4); cv(1)
            if i + 1 < NT:
                qk(i + 1)
                if i + 3 < NT: rdK(i + 3)
            ex(5); ex(6); cv(2); ex(7); ex(8); cv(3); ex(9); ex(10)
            pv(i, 0)
            for _ in range(3):
                if bg and i < 16: bg.pop(0)()
            cv(4); ex(11); ex(12); cv(5); ex(13); ex(14); cv(6); ex(15)
            if i & 1 and i + 1 < NT:
                a(f"s_cmp_eq_u32 s{sNB}, {i >> 1}")
            else:
                a.nop(1)
            cv(7)
            if i & 1 and i + 1 < NT:
                if bg:
                    Lx = a.newlabel("aearly")
                    a(f"s_cbranch_scc1 {Lx}")
                    self.early.append((Lx, len(bg)))
                else:
                    a(f"s_cbranch_scc1 {Ltail}")
        assert not bg
        a.label(Ltail)
        self.att_tail = Ltail
        a.drain(lg=True, force=True)
        a.nop(1)
        pv(NT - 1, 1)
        a(f"s_lshl_b32 s{T0}, s{S_C}, 11"); a(f"s_add_u32 s{T0}, s{T0}, s{S_HBW}")
        toks = []
        for e in range(2):
            ov = O[e] + 8 * e; lv = O[e] + 8 * (1 - e)
            Lfb = a.newlabel("fb"); Lbk = a.newlabel("fbret")
            a(f"v_subrev_u32 v{V_T1}, 0x2b800000, v{lv}")
            a(f"v_cmp_lt_u32 vcc, {0 if self.force_fallback else 0x28000000}, v{V_T1}")
            a(f"s_cbranch_vccnz {Lfb}")
            a.label(Lbk)
            self.fallback(Lfb, Lbk, e, S[0], O[e], P, Kr[0], Vr[e], Q + 4 * e, MD, MF, vA, sNB)
            a(f"v_rcp_f32 v{V_T1}, v{lv}")
            for r in range(8):
                a(f"v_mul_f32 v{ov+r}, v{V_T1}, v{ov+r}")
            for j in range(4):
                a(f"v_cvt_pk_bf16_f32 v{ov+j}, v{ov+2*j}, v{ov+2*j+1}")
            toks.append(a(f"buffer_store_dwordx4 {vr(ov,4)}, v{V_L16}, {sr(SRD_WS,4)}, s{T0} offen offset:{1024*e} {sc}"))
        a(f"s_lshl2_add_u32 s{T0}, s{S_C}, s{S_FLW}"); a(f"s_add_u32 s{T0}, s{T0}, {(4*L+0)*128}")
        a.wait(*toks)
        self.set_flag(f"s{T0}", sc)
        self.stamp(f"att{L}")

    def fallback(self, Lfb, Lbk, e, S, O, P, K, V, Q, MD, MF, vA, sNB):
        b = Asm(); b.nlabel = self.a.nlabel + 1000
        vB, vM, sJ = 31, V_T2, TA + 1
        mf = lambda d, A, B, c: b(f"v_mfma_f32_32x32x16_bf16 {vr(d,16)}, {A}, {B}, {c}")
        b.label(Lfb)
        b.nop(16)

        def scores(tag):
            l1, l2, l3 = f"{Lfb}_{tag}a", f"{Lfb}_{tag}b", f"{Lfb}_{tag}c"
            b(f"ds_read_b128 {vr(K,4)}, v{vB} offset:{e*1024}")
            b.drain(lg=True)
            b(f"s_cmp_eq_u32 s{sJ}, 0"); b(f"s_cbranch_scc1 {l1}")
            b(f"s_cmp_eq_u32 s{sJ}, 8"); b(f"s_cbranch_scc1 {l2}")
            mf(S, vr(K, 4), vr(Q, 4), "0"); b(f"s_branch {l3}")
            b.label(l1); mf(S, vr(K, 4), vr(Q, 4), vr(MD, 16)); b(f"s_branch {l3}")
            b.label(l2); mf(S, vr(K, 4), vr(Q, 4), vr(MF, 16))
            b.label(l3)
            b.nop(16)

        def loop_end(lab):
            b(f"v_subrev_u32 v{vB}, 4096, v{vB}")
            b(f"s_add_u32 s{sJ}, s{sJ}, 1"); b(f"s_cmp_le_u32 s{sJ}, s{sNB}"); b(f"s_cbranch_scc1 {lab}")
        b(f"v_add_u32 v{vB}, {G + 32768}, v{vA}"); b(f"s_mov_b32 s{sJ}, 0"); b(f"v_mov_b32 v{vM}, 0xff7fffff")
        b.label(Lfb + "_p1")
        scores("x")
        for r in range(0, 16, 2):
            b(f"v_max3_f32 v{vM}, v{vM}, v{S+r}, v{S+r+1}")
        loop_end(Lfb + "_p1")
        b(f"v_mov_b32 v{V_T1}, v{vM}"); b(f"v_permlane32_swap_b32 v{V_T1}, v{vM}"); b(f"v_max_f32 v{vM}, v{vM}, v{V_T1}")
        for r in range(16):
            b(f"v_mov_b32 v{O+r}, 0")
        b(f"v_add_u32 v{vB}, {G + 32768}, v{vA}"); b(f"s_mov_b32 s{sJ}, 0")
        b.label(Lfb + "_p2")
        b(f"s_mov_b64 exec, {sr(S_E1 if e else S_E0, 2)}")
        b(f"ds_read_b128 {vr(V,4)}, v{vB} offset:2048"); b(f"ds_read_b128 {vr(V+4,4)}, v{vB} offset:3072")
        b("s_mov_b64 exec, -1")
        scores("y")
        for r in range(16):
            b(f"v_sub_f32 v{S+r}, v{S+r}, v{vM}")
        for r in range(16):
            b(f"v_exp_f32 v{S+r}, v{S+r}")
        for j in range(8):
            b(f"v_cvt_pk_bf16_f32 v{P+j}, v{S+2*j}, v{S+2*j+1}")
        mf(O, vr(V, 4), vr(P, 4), vr(O, 16)); mf(O, vr(V + 4, 4), vr(P + 4, 4), vr(O, 16))
        b.nop(16)
        loop_end(Lfb + "_p2")
        b(f"s_branch {Lbk}")
        self.a.ool.append("\n".join(b.lines))

    def narrow(self, L, down, sc):
        a = self.a
        nk = 22 if down else 8
        AW = A_WD if down else A_WO
        T = [V_ACC, V_ACC + 16, V_ACC + 32]
        xreg = lambda n: V_X + 4 * n if n < 32 else V_ACC + 48 + 4 * (n - 32)
        self.lane(V_T1)
        a(f"s_and_b32 s{T0}, s{S_TBS}, 0xfffffffe"); a(f"s_lshl_b32 s{T0}, s{T0}, 10")
        if not down:
            a(f"s_lshl4_add_u32 s{T0}, s{S_W}, s{T0}"); a(f"s_add_u32 s{T0}, s{T0}, {FL + (4*L+0)*128}")
            a(f"v_lshrrev_b32 v{V_T2}, 2, v{V_T1}"); a(f"v_lshlrev_b32 v{V_T2}, 10, v{V_T2}")
            a(f"v_and_b32 v{V_T1}, 3, v{V_T1}"); a(f"v_lshl_add_u32 v{V_T1}, v{V_T1}, 2, v{V_T2}")
            self.poll("0xff", f"s{T0}")
        else:
            a(f"s_add_u32 s{T0}, s{T0}, {FL + (4*L+2)*128}")
            a(f"s_lshl_b32 s{T0+1}, s{S_W}, 2")
            a(f"s_add_u32 s{T0+2}, s{S_W}, 16"); a(f"s_add_u32 s{T0+3}, s{S_W}, 20")
            a(f"s_cmp_lt_u32 s{S_W}, 2"); a(f"s_cselect_b32 s{T0+3}, s{T0+3}, s{T0+2}")
            a(f"v_and_b32 v28, 7, v{V_T1}")
            a(f"v_add_u32 v29, s{T0+1}, v28"); a(f"v_mov_b32 v30, s{T0+2}"); a(f"v_mov_b32 v31, s{T0+3}")
            a(f"v_cmp_gt_u32 vcc, 4, v28"); a(f"v_cndmask_b32 v29, v30, v29, vcc")
            a(f"v_cmp_gt_u32 vcc, 6, v28"); a(f"v_cndmask_b32 v29, v31, v29, vcc")
            a(f"v_lshrrev_b32 v{V_T2}, 3, v{V_T1}"); a(f"v_lshlrev_b32 v{V_T2}, 10, v{V_T2}")
            a(f"v_lshl_add_u32 v{V_T1}, v29, 2, v{V_T2}")
            self.poll("0xffff", f"s{T0}")
        self.full_exec()
        self.stamp(f"{'h' if down else 'o'}poll{L}")
        sX, sB = TA, TA + 1

        def xl(n):
            half, i = divmod(n, nk)
            if i == 0:
                a(f"s_mul_i32 s{sB}, s{S_TBS if half else S_TBO}, {HB_P}"); a(f"s_add_u32 s{sB}, s{sB}, {HB}")
                a(f"s_mul_i32 s{sX}, s{S_W}, {(20 if down else 8)*1024}"); a(f"s_add_u32 s{sX}, s{sX}, s{sB}")
            if i == 20:
                a(f"s_add_u32 s{sX}, s{S_W}, 80"); a(f"s_lshl_b32 s{sX}, s{sX}, 10"); a(f"s_add_u32 s{sX}, s{sX}, s{sB}")
            if i == 21:
                a(f"s_cmp_lt_u32 s{S_W}, 2"); a(f"s_cselect_b32 s3, 4096, 0"); a(f"s_add_u32 s{sX}, s{sX}, s3")
            o = (i & 3) * 1024 if i < 20 else 0
            a(f"buffer_load_dwordx4 {vr(xreg(n),4)}, v{V_L16}, {sr(SRD_WS,4)}, s{sX} offen offset:{o} sc1")
            if i < 20 and i & 3 == 3: a(f"s_add_u32 s{sX}, s{sX}, 4096")
        loads = [lambda n=n: xl(n) for n in range(2 * nk)]
        for _ in range(8): loads.pop(0)()
        for x, vv in ((2, 28), (3, 29), (1, 30)):
            a(f"s_xor_b32 s3, s{S_W4K}, {x*4096}"); a(f"v_add_u32 v{vv}, s3, v{V_L16}")
        a(f"v_add_u32 v31, s{S_W4K}, v{V_L16}")
        wr = lambda i, q: a(f"ds_write_b128 v{28+i}, {vr(T[i]+4*q,4)} offset:{G + 16384*i + 1024*q}")
        fill = []
        for n in range(2 * nk):
            half, i = divmod(n, nk)
            X = vr(xreg(n), 4)
            c0 = "0" if i == 0 else None
            if half == 0:
                self.mfma(T[0], ar(AW + 8 * i, 4), X, c0)
                if loads: loads.pop(0)()
                self.mfma(T[1], ar(AW + 8 * i + 4, 4), X, c0)
            else:
                self.mfma(T[2], ar(AW + 8 * i + 4, 4), X, c0)
                if loads: loads.pop(0)()
                if i == 0:
                    a("s_barrier")
                    fill = [lambda t=t, q=q: wr(t, q) for t in range(2) for q in range(4)]
                elif i >= 3 and fill: fill.pop(0)()
                self.mfma(V_OWN, ar(AW + 8 * i, 4), X)
                if i >= 3 and fill and not down: fill.pop(0)()
        while fill: fill.pop(0)()
        for q in range(4): wr(2, q)
        a.drain(lg=True)
        a("s_barrier")
        self.stamp(f"{'dn' if down else 'wo'}mm{L}")
        for i in range(3):
            for q in range(4):
                a(f"ds_read_b128 {vr(T[i]+4*q,4)}, v31 offset:{G + 16384*i + 1024*q}")
        for i in range(3):
            for r in range(16):
                a(f"v_add_f32 v{V_OWN+r}, v{V_OWN+r}, v{T[i]+r}")
        PK = V_ACC
        for j in range(8):
            a(f"v_cvt_pk_bf16_f32 v{PK+j}, v{V_OWN+2*j}, v{V_OWN+2*j+1}")
        if down and L == 1:
            self.lane(V_T1)
            a(f"v_and_b32 v{V_T2}, 31, v{V_T1}"); a(f"v_lshlrev_b32 v{V_T2}, 10, v{V_T2}")
            a(f"v_lshrrev_b32 v{V_T1}, 5, v{V_T1}"); a(f"v_lshl_add_u32 v{V_T2}, v{V_T1}, 4, v{V_T2}")
            a(f"s_lshl_b32 s{T0}, s{S_TBS}, 15"); a(f"s_lshl_b32 s{T0+1}, s{S_FB}, 6"); a(f"s_add_u32 s{T0}, s{T0}, s{T0+1}")
            for s in range(2):
                a(f"v_permlane32_swap_b32 v{PK+4*s}, v{PK+4*s+2}")
                a(f"v_permlane32_swap_b32 v{PK+4*s+1}, v{PK+4*s+3}")
                a(f"buffer_store_dwordx4 {vr(PK+4*s,4)}, v{V_T2}, {sr(SRD_OUT,4)}, s{T0} offen offset:{32*s}")
            return
        a(f"s_mul_i32 s{T0}, s{S_TBS}, {XB_P}"); a(f"s_add_u32 s{T0}, s{T0}, {XB}")
        a(f"s_lshl_b32 s{T0+1}, s{S_FB}, 11"); a(f"s_add_u32 s{T0+1}, s{T0+1}, s{T0}")
        toks = []
        for s in range(2):
            toks.append(a(f"buffer_store_dwordx4 {vr(PK+4*s,4)}, v{V_L16}, {sr(SRD_WS,4)}, s{T0+1} offen offset:{1024*s} {sc}"))
        s0, s1, q0, q1 = V_ACC + 8, V_ACC + 9, V_ACC + 10, V_ACC + 11
        a(f"v_add_f32 v{s0}, v{V_OWN}, v{V_OWN+1}"); a(f"v_add_f32 v{s1}, v{V_OWN+2}, v{V_OWN+3}")
        a(f"v_mul_f32 v{q0}, v{V_OWN}, v{V_OWN}"); a(f"v_mul_f32 v{q1}, v{V_OWN+1}, v{V_OWN+1}")
        for r in range(2, 16):
            if r >= 4: a(f"v_add_f32 v{s0+(r&1)}, v{s0+(r&1)}, v{V_OWN+r}")
            a(f"v_fmac_f32 v{q0+(r&1)}, v{V_OWN+r}, v{V_OWN+r}")
        a(f"v_add_f32 v{s0}, v{s0}, v{s1}"); a(f"v_add_f32 v{q0}, v{q0}, v{q1}")
        a(f"s_lshr_b32 s{T0+1}, s{S_FB}, 2"); a(f"s_lshl_b32 s{T0+1}, s{T0+1}, 10"); a(f"s_add_u32 s{T0}, s{T0}, s{T0+1}")
        a(f"v_permlane32_swap_b32 v{s0}, v{q0}")
        a(f"s_and_b32 s{T0+1}, s{S_FB}, 3"); a(f"s_lshl2_add_u32 s{T0}, s{T0+1}, s{T0}"); a(f"s_add_u32 s{T0}, s{T0}, 32768")
        a(f"v_add_f32 v{s0}, v{s0}, v{q0}")
        toks.append(a(f"buffer_store_dword v{s0}, v{V_L16}, {sr(SRD_WS,4)}, s{T0} offen {sc}"))
        a(f"s_lshl_b32 s{T0}, s{S_TBS}, 10"); a(f"s_lshl2_add_u32 s{T0}, s{S_FB}, s{T0}")
        a(f"s_add_u32 s{T0}, s{T0}, {FL + (4*L + (3 if down else 1))*128}")
        a.wait(*toks)
        self.set_flag(f"s{T0}", sc)
        self.stamp(f"{'dn' if down else 'wo'}{L}")

    def gateup(self, L, sc):
        a = self.a
        ST = V_ACC + 80
        for s in range(2, 8):
            for op in self.ring_fill_ops(s): op()
        a(f"v_lshrrev_b32 v{V_T1}, 2, v{V_L16}")
        a(f"s_add_u32 s{T0}, s{S_FLW}, {(4*L+1)*128}")
        self.poll("0xffff", f"s{T0}")
        self.full_exec()
        self.stamp(f"x1poll{L}")
        sX = TA
        a(f"s_mov_b32 s{sX}, s{S_XBW}")

        def xl(k):
            dst = V_X + 4 * k if k < 32 else ST + 4 * (k - 32)
            a(f"buffer_load_dwordx4 {vr(dst,4)}, v{V_L16}, {sr(SRD_WS,4)}, s{sX} offen offset:{(k&3)*1024} sc1")
            if k & 3 == 3: a(f"s_add_u32 s{sX}, s{sX}, 4096")
        loads = [lambda k=k: xl(k) for k in range(36)]
        for _ in range(8): loads.pop(0)()
        vAg = 28
        a(f"v_bfe_u32 v{vAg}, v{V_L16}, 4, 5"); a(f"v_lshlrev_b32 v{vAg}, 2, v{vAg}")
        a(f"v_and_b32 v29, 0x200, v{V_L16}"); a(f"v_add_u32 v{vAg}, v{vAg}, v29")
        dma = []
        NA, NALL = 165, 198

        def is_aug(n): return 160 <= n < 165 or n == 197

        def rd(n, nseg):
            if n % 8 == 0:
                s = n // 8
                a.wait(self.ring_tok[s])
                a("s_barrier")
                if s >= 2 and s + 6 < nseg:
                    dma.extend(self.ring_fill_ops(s + 6))
            d = A_STG + 4 * (n % 4)
            if is_aug(n):
                a(f"v_add_u32 v29, {self.ring_slot(n)}, v{vAg}")
                a(f"ds_read2_b32 {ar(d,2)}, v29 offset0:0 offset1:32")
                a(f"ds_read2_b32 {ar(d+2,2)}, v29 offset0:64 offset1:96")
            else:
                a(f"ds_read_b128 {ar(d,4)}, v{V_L16} offset:{self.ring_slot(n)}")

        def epi(j, soff, imm, toks):
            acc = V_ACC + 16 * j
            ops = []
            for r in range(8):
                ops.append(lambda r=r: a(f"v_mul_f32 v{acc+r}, v{V_RS}, v{acc+r}"))
            for r in range(8):
                ops.append(lambda r=r: a(f"v_mul_f32 v{acc+r}, v{acc+r}, v{acc+8+r}"))
            for q in range(4):
                ops.append(lambda q=q: a(f"v_cvt_pk_bf16_f32 v{acc+q}, v{acc+2*q}, v{acc+2*q+1}"))
            ops.append(lambda: toks.append(a(f"buffer_store_dwordx4 {vr(acc,4)}, v{V_L16}, {sr(SRD_WS,4)}, {soff} offen offset:{imm} {sc}")))
            return ops
        fill = self.stats_from_partials(ST)
        fill += [lambda i=i: a(f"v_mov_b32 v{V_AUG+i}, v{V_AUG}") for i in (1, 2, 3)]
        fill += [lambda: a(f"v_mul_f32 v{V_RS}, v{V_RS}, v{V_RS}")]
        NSEG = 25
        for n in range(4): rd(n, NSEG)
        for n in range(NA):
            k, j = divmod(n, 5)
            X = vr(V_X + 4 * k, 4) if k < 32 else vr(V_AUG, 4)
            if k == 32 and j == 0:
                while fill: fill.pop(0)()
            self.mfma(V_ACC + 16 * j, ar(A_STG + 4 * (n % 4), 4), X, "0" if k == 0 else None)
            if j == 0 and loads: loads.pop(0)()
            elif j in (2, 4) and dma: dma.pop(0)()
            if n + 4 < 168: rd(n + 4, NSEG)
            if k >= 29 or (k == 28 and j >= 3):
                for _ in range(2):
                    if fill: fill.pop(0)()
        while dma: dma.pop(0)()
        self.stamp(f"gua{L}")
        sH = TA
        a(f"s_mul_i32 s{sH}, s{S_C}, 5120"); a(f"s_add_u32 s{sH}, s{sH}, s{S_HBW}"); a(f"s_add_u32 s{sH+1}, s{sH}, 4096")
        a(f"s_lshl2_add_u32 s{T0}, s{S_C}, s{S_FLW}"); a(f"s_add_u32 s{T0}, s{T0}, {(4*L+2)*128}")
        L5 = a.newlabel("five"); Lj = a.newlabel("gujoin")
        a(f"s_cmp_ge_u32 s{S_C}, 6"); a(f"s_cbranch_scc1 {L5}")
        snap = a.snapshot()
        toks = []
        fill = []
        for j in range(5):
            fill += epi(j, f"s{sH + (j >> 2)}", (j & 3) * 1024, toks)
        rd(168, NSEG)
        flagged = False
        for n in range(NA, NALL):
            k = n - NA
            X = vr(V_X + 4 * k, 4) if k < 32 else vr(V_AUG, 4)
            self.mfma(V_ACC + 80, ar(A_STG + 4 * (n % 4), 4), X, "0" if k == 0 else None)
            if n + 4 < NALL: rd(n + 4, NSEG)
            if k >= 1:
                for _ in range(4):
                    if fill: fill.pop(0)()
        assert not fill
        a.wait(*toks)
        self.set_flag(f"s{T0}", sc)
        a(f"s_add_u32 s{sH}, s{S_C}, 80"); a(f"s_lshl_b32 s{sH}, s{sH}, 10"); a(f"s_add_u32 s{sH}, s{sH}, s{S_HBW}")
        a(f"s_add_u32 s{T0}, s{T0}, 64")
        toks = []
        for op in epi(5, f"s{sH}", 0, toks): op()
        a.wait(*toks)
        self.set_flag(f"s{T0}", sc)
        a.drain(lg=True)
        main_lines = a.lines
        after = a.snapshot()
        a.lines = []
        a.restore(snap)
        a.label(L5)
        toks = []
        for j in range(5):
            for op in epi(j, f"s{sH + (j >> 2)}", (j & 3) * 1024, toks): op()
        a.drain(vm=True, lg=True, force=True)
        self.set_flag(f"s{T0}", sc)
        a(f"s_branch {Lj}")
        a.ool.append("\n".join(a.lines))
        a.lines = main_lines
        a.restore(after)
        a.label(Lj)
        self.stamp(f"gu{L}")

    def epoch_update(self):
        a = self.a
        Ls = a.newlabel("noepoch")
        a(f"s_or_b32 s{T0}, s2, s{S_W}"); a(f"s_cmp_lg_u32 s{T0}, 0"); a(f"s_cbranch_scc1 {Ls}")
        a(f"v_lshlrev_b32 v{V_T1}, 3, v{V_L16}")
        for q in range(4):
            a(f"s_mov_b32 s{T0}, {HELLO + q*8192}")
            self.poll("-1", f"s{T0}", cmpmask=V_X)
        self.set_flag("0", "sc1", maybe=True)
        a.label(Ls)

    def body(self, sc):
        a = self.a
        for L in range(2):
            self.ring_tok = {}
            self.early = []
            if L == 0:
                wo, wd = self.w_loads()
                for op in wo: op()
                mk = lambda: self.ring_fill_ops(0) + self.ring_fill_ops(1) + self.w_loads()[1]
            else:
                self.qkv2()
                if self.check_stop("qkv2"): return
                a.drain(vm=True)
                self.epoch_update()
                mk = lambda: self.ring_fill_ops(0) + self.ring_fill_ops(1)
            bg = mk()
            total = len(bg)
            self.attention(L, sc, bg)
            keep = (a.lines, a.snapshot(), dict(self.ring_tok))
            for lab, left in self.early:
                a.lines = []
                a.assume_drained(vm=True, lg=True)
                a.label(lab)
                for op in mk()[total - left:]: op()
                a(f"s_branch {self.att_tail}")
                a.ool.append("\n".join(a.lines))
            a.lines = keep[0]; a.restore(keep[1])
            self.ring_tok = {0: None, 1: None}
            if self.check_stop(f"att{L}"): return
            self.narrow(L, False, sc)
            if self.check_stop(f"wo{L}"): return
            self.gateup(L, sc)
            if self.check_stop(f"gu{L}"): return
            self.narrow(L, True, sc)
            if self.check_stop(f"dn{L}"): return
        self.finish()

    def build(self):
        a = self.a
        self.prologue()
        self.qkv1()
        if not self.check_stop("qkv1"):
            self.side_work()
            a.drain(vm=True, lg=True)
            Lslow = "L_slow"
            if self.force_slow:
                a(f"s_branch {Lslow}")
            else:
                a(f"s_cbranch_vccnz {Lslow}")
            snap = a.snapshot(); nst = self.nst
            self.body("")
            fast_ool = a.ool; a.ool = []
            a.lines += fast_ool
            self.stopped = False
            a.restore(snap); self.nst = nst
            a.label(Lslow)
            self.body("sc1")
        txt = a.text()
        txt += f""".section .rodata,"a"
.p2align 6
.amdhsa_kernel {KN}
  .amdhsa_next_free_vgpr 512
  .amdhsa_next_free_sgpr 102
  .amdhsa_accum_offset 256
  .amdhsa_group_segment_fixed_size 0
  .amdhsa_kernarg_size 80
  .amdhsa_user_sgpr_count 2
  .amdhsa_user_sgpr_kernarg_segment_ptr 1
  .amdhsa_system_sgpr_workgroup_id_x 1
.end_amdhsa_kernel
"""
        return txt


if __name__ == "__main__":
    import argparse
    ap = argparse.ArgumentParser()
    ap.add_argument("-o", default="k.s")
    ap.add_argument("--stop"); ap.add_argument("--stamps", action="store_true")
    ap.add_argument("--slow", action="store_true"); ap.add_argument("--fallback", action="store_true")
    args = ap.parse_args()
    g = Gen(stop=args.stop, stamps=args.stamps, force_slow=args.slow, force_fallback=args.fallback)
    t = g.build()
    open(args.o, "w").write(t)
    print("instructions", g.a.ninstr, "nop states", g.a.nops, "bytes", len(t))
```

```python
import re

TRANS = ("v_exp_f32", "v_log_f32", "v_rcp_f32", "v_rsq_f32", "v_sqrt_f32", "v_sin_f32", "v_cos_f32")
_reg_re = re.compile(r"^(-|abs\()?([vas])(?:(\d+)|\[(\d+):(\d+)\])\)?$")


def regs_of(op):
    op = op.strip()
    if op in ("vcc", "vcc_lo", "vcc_hi"):
        return [("s", "vcc")]
    if op == "exec":
        return [("s", "exec")]
    if op == "m0":
        return [("s", "m0")]
    m = _reg_re.match(op)
    if not m:
        return []
    k = m.group(2)
    if m.group(3) is not None:
        return [(k, int(m.group(3)))]
    return [(k, i) for i in range(int(m.group(4)), int(m.group(5)) + 1)]


_brk = re.compile(r"\s(quad_perm|op_sel|op_sel_hi|neg_lo|neg_hi):\[[^\]]*\]")


def split_ops(text):
    text = _brk.sub("", text)
    parts = text.split(None, 1)
    mn = parts[0]
    if len(parts) == 1:
        return mn, [], []
    rest = parts[1]
    ops = [o.strip() for o in rest.split(",")]
    mods = []
    if ops:
        last = ops[-1].split()
        if last:
            ops[-1] = last[0]
            mods = last[1:]
    return mn, ops, mods


class Tok:
    __slots__ = ("kind", "done", "counted")

    def __init__(self, kind, counted=True):
        self.kind = kind
        self.done = False
        self.counted = counted


class Asm:
    def __init__(self):
        self.lines = []
        self.ool = []
        self.t = 0
        self.vmq = []
        self.lgq = []
        self.pending = {}
        self.valu_w = {}
        self.trans_w = {}
        self.mfma_w = {}
        self.mfma_c = {}
        self.store_r = {}
        self.sg_valu_w = {}
        self.m0_w = -100
        self.nops = 0
        self.nlabel = 0
        self.ninstr = 0
        self.smem_out = False
        self.named = {}

    def raw(self, s):
        self.lines.append(s)

    def comment(self, s):
        self.lines.append("; " + s)

    def newlabel(self, base):
        self.nlabel += 1
        return f"L{self.nlabel}_{base}"

    def label(self, name):
        self.lines.append(name + ":")

    def _out(self, s, states=1):
        self.lines.append(" " + s.replace(" offset:0 ", " ").rstrip())
        self.t += states
        self.ninstr += 1

    def nop(self, n):
        while n > 0:
            k = min(n, 16)
            self._out(f"s_nop {k-1}", k)
            n -= k

    def _count_after(self, q, tok):
        i = q.index(tok)
        return sum(1 for x in q[i + 1:] if x.counted), i

    def wait(self, *toks):
        vm = None
        lg = None
        for tok in toks:
            if tok is None or tok.done:
                continue
            if tok.kind == "vm":
                n, i = self._count_after(self.vmq, tok)
                if vm is None or i > vm[1]:
                    vm = (n, i)
            else:
                n, i = self._count_after(self.lgq, tok)
                if lg is None or i > lg[1]:
                    lg = (n, i)
        if vm is None and lg is None:
            return
        s = "s_waitcnt"
        if vm is not None:
            s += f" vmcnt({min(vm[0], 63)})"
            self._retire(self.vmq, vm[1])
        if lg is not None:
            if self.smem_out:
                s += " lgkmcnt(0)"
                self._retire(self.lgq, len(self.lgq) - 1)
                self.smem_out = False
            else:
                s += f" lgkmcnt({min(lg[0], 15)})"
                self._retire(self.lgq, lg[1])
        self._out(s)

    def _retire(self, q, i):
        for x in q[:i + 1]:
            x.done = True
        del q[:i + 1]
        self.pending = {r: k for r, k in self.pending.items() if not k.done}

    def drain(self, vm=False, lg=False, force=False):
        s = "s_waitcnt"
        need = force
        if vm:
            need |= bool(self.vmq)
            s += " vmcnt(0)"
            if self.vmq:
                self._retire(self.vmq, len(self.vmq) - 1)
        if lg:
            need |= bool(self.lgq)
            s += " lgkmcnt(0)"
            if self.lgq:
                self._retire(self.lgq, len(self.lgq) - 1)
            self.smem_out = False
        if need:
            self._out(s)

    def assume_drained(self, vm=False, lg=False):
        if vm and self.vmq:
            self._retire(self.vmq, len(self.vmq) - 1)
        if lg and self.lgq:
            self._retire(self.lgq, len(self.lgq) - 1)
            self.smem_out = False

    def snapshot(self):
        import copy
        memo = {}
        return copy.deepcopy((self.t, self.vmq, self.lgq, self.pending, self.valu_w, self.trans_w, self.mfma_w,
                              self.mfma_c, self.store_r, self.sg_valu_w, self.m0_w, self.smem_out, self.named), memo)

    def restore(self, snap):
        import copy
        (self.t, self.vmq, self.lgq, self.pending, self.valu_w, self.trans_w, self.mfma_w,
         self.mfma_c, self.store_r, self.sg_valu_w, self.m0_w, self.smem_out, self.named) = copy.deepcopy(snap)

    def __call__(self, text, maybe=False):
        mn, ops, mods = split_ops(text)
        R = [regs_of(o) for o in ops]
        reads, writes = [], []
        kind = "salu"
        is_store = False
        wide = False
        tok = None
        if mn.startswith("v_mfma"):
            kind = "mfma"
            writes = R[0]
            reads = R[1] + R[2] + R[3]
        elif mn.startswith("v_"):
            kind = "valu"
            writes = list(R[0])
            reads = [r for x in R[1:] for r in x]
            if mn.startswith("v_permlane"):
                writes = R[0] + R[1]
                reads = R[0] + R[1]
            elif mn.startswith(("v_fmac", "v_dot2c", "v_writelane")) or "sdwa" in mn or "dpp" in mn:
                reads += R[0]
            elif mn.startswith(("v_add_co", "v_addc_co", "v_sub_co")):
                writes = R[0] + R[1]
                reads = [r for x in R[2:] for r in x]
        elif mn.startswith("ds_read"):
            kind = "ds"
            writes = R[0]
            reads = R[1]
        elif mn.startswith("ds_"):
            kind = "ds"
            reads = [r for x in R for r in x]
        elif mn.startswith("buffer_load") or mn.startswith("global_load"):
            kind = "vmem"
            if "lds" in mods or "_lds_" in mn:
                reads = [r for x in R for r in x] + [("s", "m0")]
            else:
                writes = R[0]
                reads = [r for x in R[1:] for r in x]
        elif mn.startswith(("buffer_store", "global_store", "buffer_atomic")):
            kind = "vmem"
            is_store = True
            wide = "x3" in mn or "x4" in mn
            reads = [r for x in R for r in x]
        elif mn.startswith(("buffer_wbl2", "buffer_inv")):
            kind = "vmem"
        elif mn.startswith(("s_load", "s_memtime", "s_memrealtime")):
            kind = "smem"
            writes = R[0]
            reads = [r for x in R[1:] for r in x]
        elif mn.startswith(("s_cmp", "s_cbranch", "s_branch", "s_barrier", "s_waitcnt", "s_nop", "s_sleep",
                            "s_setprio", "s_endpgm", "s_bitcmp", "s_setpc")):
            reads = [r for x in R for r in x]
        elif mn.startswith("s_"):
            writes = R[0] if R else []
            reads = [r for x in R[1:] for r in x]
        else:
            raise ValueError("unknown instruction " + text)

        need = [self.pending[r] for r in reads + writes if r in self.pending]
        if need:
            self.wait(*need)

        pad = 0

        def req(tw, n):
            nonlocal pad
            if tw is not None:
                pad = max(pad, n - (self.t - tw - 1))

        vec = lambda rs: [r for r in rs if r[0] in "va"]
        if kind == "mfma":
            for r in reads:
                req(self.valu_w.get(r), 2)
            for r in R[1] + R[2]:
                w = self.mfma_w.get(r)
                if w:
                    req(w[0], 12)
            same = (R[3][0], len(R[3])) if R[3] else None
            for r in R[3]:
                w = self.mfma_w.get(r)
                if w and (w[1], w[2]) != same:
                    req(w[0], 10)
            for r in R[0]:
                w = self.mfma_w.get(r)
                if w and (w[1], w[2]) != (R[0][0], len(R[0])):
                    req(w[0], 10)
            req(self.sg_valu_w.get(("s", "exec")), 4)
        elif kind == "valu":
            for r in vec(reads + writes):
                w = self.mfma_w.get(r)
                if w:
                    req(w[0], 12)
            for r in vec(writes):
                req(self.mfma_c.get(r), 7)
                req(self.store_r.get(r), 2)
            if mn.split("_e")[0] not in TRANS and mn not in TRANS:
                for r in vec(reads):
                    req(self.trans_w.get(r), 1)
            if mn.startswith("v_permlane") or "dpp" in mn:
                for r in vec(reads):
                    req(self.valu_w.get(r), 2)
            if mn.startswith(("v_readfirstlane", "v_readlane")):
                for r in vec(reads):
                    req(self.valu_w.get(r), 1)
            for r in reads:
                if r[0] == "s":
                    req(self.sg_valu_w.get(r), 2)
        elif kind in ("ds", "vmem"):
            for r in vec(reads + writes):
                w = self.mfma_w.get(r)
                if w:
                    req(w[0], 12)
            for r in vec(writes):
                req(self.store_r.get(r), 1)
                req(self.mfma_c.get(r), 7)
            for r in vec(reads):
                req(self.trans_w.get(r), 1)
            if kind == "vmem":
                for r in reads:
                    if r[0] == "s":
                        req(self.sg_valu_w.get(r), 5)
                if ("s", "m0") in reads:
                    req(self.m0_w, 1)
        elif kind in ("salu", "smem"):
            for r in reads:
                if r[0] == "s":
                    req(self.sg_valu_w.get(r), 1)
        if pad > 0:
            self.nops += pad
            self.nop(pad)

        now = self.t
        states = 1
        if mn == "s_nop":
            states = int(ops[0]) + 1
        self._out(text, states)

        if kind == "mfma":
            for r in R[0]:
                self.mfma_w[r] = (now, R[0][0], len(R[0]))
                self.valu_w.pop(r, None)
            for r in R[3]:
                self.mfma_c[r] = now
        elif kind == "valu":
            for r in writes:
                if r[0] == "s":
                    self.sg_valu_w[r] = now
                else:
                    self.valu_w[r] = now
                    self.mfma_w.pop(r, None)
                    if mn in TRANS:
                        self.trans_w[r] = now
                    else:
                        self.trans_w.pop(r, None)
        elif kind == "salu":
            for r in writes:
                self.sg_valu_w.pop(r, None)
                if r == ("s", "m0"):
                    self.m0_w = now
        if kind == "vmem":
            tok = Tok("vm", counted=not maybe)
            self.vmq.append(tok)
            if is_store and wide:
                for r in R[0]:
                    self.store_r[r] = now
        elif kind == "ds":
            tok = Tok("lg", counted=not maybe)
            self.lgq.append(tok)
        elif kind == "smem":
            tok = Tok("lg")
            self.lgq.append(tok)
            self.smem_out = True
        if tok is not None:
            for r in writes:
                self.pending[r] = tok
                self.mfma_w.pop(r, None)
        return tok

    _FIELDS = ("t", "vmq", "lgq", "pending", "valu_w", "trans_w", "mfma_w", "mfma_c", "store_r", "sg_valu_w",
               "m0_w", "smem_out", "named")

    def begin_ool(self):
        keep = (self.lines, [getattr(self, f) for f in self._FIELDS])
        self.restore(tuple(keep[1]))
        self.lines = []
        return keep

    def end_ool(self, keep):
        self.ool.append("\n".join(self.lines))
        self.lines = keep[0]
        for f, v in zip(self._FIELDS, keep[1]):
            setattr(self, f, v)

    def text(self):
        return "\n".join(self.lines + self.ool) + "\n"


def vr(a, n=1):
    return f"v{a}" if n == 1 else f"v[{a}:{a+n-1}]"


def ar(a, n=1):
    return f"a{a}" if n == 1 else f"a[{a}:{a+n-1}]"


def sr(a, n=1):
    return f"s{a}" if n == 1 else f"s[{a}:{a+n-1}]"
```

```python
import sys, os
sys.path.insert(0, os.path.dirname(os.path.abspath(__file__)))
from asmlib import *

KN = "interleave_layers__sliding_block__glu_gated_bilinear__prompt_kernel"

EPOCH = 0
HELLO = 0x1000
FRP_GU = 0x20000
FKV = 0x40000
STAMPS = 0x80000
FRP_WD = 0xC0000
SX = 0xE0000
XB = 0x100000; XB_P = 36 * 1024
FL = 0x340000
HB = 0x400000; HB_P = 88 * 1024
KV = 0xA00000
PGU = 0x1200000; PGU_P = 200 * 1024
PWD = 0x1600000; PWD_P = 236 * 1024
WS_BYTES = 0x10000000
OOB = 0x7FF00000

G = 0
WQ = 65536

SRD_WS, SRD_X, SRD_WQ, SRD_OUT, SRD_R0, SRD_R1 = 4, 8, 12, 16, 20, 24
S_P = 32
S_W, S_G, S_C, S_XCD, S_R, S_N, S_HELLO, S_BUD = 50, 51, 52, 53, 54, 55, 56, 57
S_TBW, S_XBW, S_HBW, S_FLW = 58, 59, 60, 61
S_TBS, S_TBO, S_FB, S_W4K = 62, 63, 64, 65
S_E0 = 66
S_MODE, S_RPK, S_QA, S_QB = 68, 69, 70, 71
T0 = 28
TA = 32
S_ST = 72

V_L16 = 0
V_T1, V_T2, V_RS = 1, 2, 3
V_CS = 4
V_AUG = 8
V_OWN = 12
V_X = 32
V_ACC = 160
A_WO, A_WD, A_STG = 0, 64, 240

NEG_BIG = 0xF149F2CA
QSCALE = 0x3EB8AA3B
ONES = 0x3F803F80
WS = sr(SRD_WS, 4)


def popn(lst, n=1):
    for _ in range(n):
        if lst:
            lst.pop(0)()


def flush(lst):
    while lst:
        lst.pop(0)()


class Base:
    def __init__(self, stop=None, stamps=False, force_slow=False, force_fallback=False, **exp):
        self.exp = exp
        self.a = Asm()
        self.stop = stop
        self.stamps = stamps
        self.nst = 0
        self.stamp_names = []
        self.force_slow = force_slow
        self.force_fallback = force_fallback
        self.stopped = False

    def P(self, k, d):
        return self.exp.get(k, d)

    def mfma(self, d, A, B, c=None):
        cs = vr(d, 16) if c is None else c
        self.a(f"v_mfma_f32_32x32x16_bf16 {vr(d,16)}, {A}, {B}, {cs}")

    def stamp(self, name, fine=False):
        if not self.stamps:
            return
        a = self.a
        if self.stamps in ("lite", "litert"):
            names = self.exp["names"]
            if name in names:
                a._out(f"{'s_memtime' if self.stamps == 'lite' else 's_memrealtime'} {sr(74 + 2*names.index(name), 2)}")
            return
        if fine:
            return
        a(f"{'s_memtime' if self.stamps == 'cyc' else 's_memrealtime'} {sr(S_ST,2)}")
        a.drain(lg=True)
        if self.stamps == "cyc":
            a(f"s_cselect_b32 s{S_ST+1}, 1, 0"); a(f"s_lshr_b32 s{S_ST}, s{S_ST}, 2"); a(f"s_cmp_lg_u32 s{S_ST+1}, 0")
        if self.nst & 1:
            a(f"s_pack_ll_b32_b16 s{74+self.nst//2}, s{74+self.nst//2}, s{S_ST}")
        else:
            a(f"s_mov_b32 s{74+self.nst//2}, s{S_ST}")
        if len(self.stamp_names) <= self.nst:
            self.stamp_names.append(name)
        self.nst += 1
        assert self.nst <= 56

    def poll_issue(self, va, soff, vd, wide=False, maybe=False):
        if wide:
            return self.a(f"buffer_load_dwordx4 {vr(vd,4)}, v{va}, {WS}, {soff} offen sc1", maybe=maybe)
        return self.a(f"buffer_load_dword v{vd}, v{va}, {WS}, {soff} offen sc1", maybe=maybe)

    def _poll_cmp(self, vd, kind, tmp):
        if kind == "mask":
            return [f"v_and_b32 v{tmp}, 0xfffffff0, v{vd}", f"v_cmp_ne_u32 vcc, s{S_N}, v{tmp}"]
        if kind == "gran":
            return [f"v_xor_b32 v{tmp}, s{S_N}, v{vd+1}", f"v_xor_b32 v{vd+3}, s{S_N}, v{vd+3}",
                    f"v_or_b32 v{tmp}, v{tmp}, v{vd+3}", f"v_cmp_ne_u32 vcc, 0, v{tmp}"]
        return [f"v_cmp_ne_u32 vcc, s{S_N}, v{vd}"]

    def poll_check(self, va, soff, vd, kind="", tmp=None):
        a = self.a
        R = a.newlabel("spin"); D = a.newlabel("got")
        cmp = self._poll_cmp(vd, kind, tmp)
        for c in cmp: a(c)
        a(f"s_cbranch_vccnz {R}")
        a.label(D)
        ld = (f"buffer_load_dwordx4 {vr(vd,4)}" if kind == "gran" else f"buffer_load_dword v{vd}") + f", v{va}, {WS}, {soff} offen sc1"
        a.ool.append("\n".join([f"{R}:", f" {ld}", f" s_sub_u32 s{S_BUD}, s{S_BUD}, 1", f" s_cbranch_scc1 {R}_x", " s_waitcnt vmcnt(0)"]
                               + [" " + c for c in cmp] + [f" s_cbranch_vccnz {R}", f" s_branch {D}",
                                                           f"{R}_x:", f" s_mov_b32 s{S_BUD}, 0", " s_waitcnt vmcnt(0)", f" s_branch {D}"]))

    def poll(self, va, soff, vd, kind="", tmp=None):
        self.poll_issue(va, soff, vd)
        self.poll_check(va, soff, vd, kind, tmp)

    def full_exec(self):
        self.a("s_mov_b64 exec, -1")

    def flag_line(self, soff, toks=(), val=S_N, maybe=False):
        a = self.a
        a(f"v_lshrrev_b32 v{V_T1}, 2, v{V_L16}")
        a(f"v_mov_b32 v{V_T2}, s{val}")
        a("s_mov_b32 exec_hi, 0")
        a.wait(*toks)
        a(f"buffer_store_dword v{V_T2}, v{V_T1}, {WS}, {soff} offen sc1", maybe=maybe)
        a("s_mov_b32 exec_hi, -1")

    def flag_local(self, soffs, toks):
        a = self.a
        S = a.newlabel("rel"); B = a.newlabel("relb")
        a(f"v_mov_b32 v{V_T2}, s{S_N}")
        a(f"s_cmp_lg_u32 s{S_MODE}, 0")
        a("s_mov_b64 exec, 1")
        a.wait(*toks)
        a(f"s_cbranch_scc1 {S}")
        for so in soffs:
            a(f"buffer_store_dword v{V_T2}, v{V_L16}, {WS}, {so} offen")
        a.label(B)
        self.full_exec()
        a.ool.append("\n".join([f"{S}:", " s_waitcnt vmcnt(0)", " buffer_wbl2 sc1", " s_waitcnt vmcnt(0)"]
                               + [f" buffer_store_dword v{V_T2}, v{V_L16}, {WS}, {so} offen sc1" for so in soffs]
                               + [f" s_branch {B}"]))

    def dsc(self, L, kind):
        return "sc1" if f"{kind}{L}" in self.P("dsc", ("o0", "x10", "h0")) else ""

    def lane(self, dst):
        self.a(f"v_lshrrev_b32 v{dst}, 4, v{V_L16}")

    def check_stop(self, name):
        if self.stop == name:
            self.finish()
            self.stopped = True
        return self.stopped

    def finish(self):
        a = self.a
        if self.stamps:
            self.stamp("end")
            a(f"s_lshl_b32 s{T0}, s2, 2"); a(f"s_add_u32 s{T0}, s{T0}, s{S_W}"); a(f"s_lshl_b32 s{T0}, s{T0}, 8")
            a(f"s_add_u32 s{T0}, s{T0}, {STAMPS}")
            a("s_mov_b64 exec, 1")
            if self.stamps in ("lite", "litert"):
                a.drain(lg=True, force=True)
                self.nst = 56
            for i in range((self.nst + 1) // 2):
                a(f"v_mov_b32 v{V_T2}, s{74+i}")
                a(f"buffer_store_dword v{V_T2}, v{V_L16}, {WS}, s{T0} offen offset:{4*i}")
            a(f"v_mov_b32 v{V_T2}, s{S_BUD}")
            a(f"buffer_store_dword v{V_T2}, v{V_L16}, {WS}, s{T0} offen offset:252")
        a("s_endpgm")

    def ops(self, *texts):
        return [lambda t=t: self.a(t) for t in texts]

    def stats_finish(self, vS, vQ, dM, dR):
        return self.ops(
            f"v_mul_f32 v{vS}, 0xbb000000, v{vS}",
            f"v_mul_f32 v{vQ}, 0x3b000000, v{vQ}",
            f"v_fma_f32 v{vQ}, -v{vS}, v{vS}, v{vQ}",
            f"v_max_f32 v{vQ}, 0, v{vQ}",
            f"v_add_f32 v{vQ}, 0x3727c5ac, v{vQ}",
            f"v_rsq_f32 v{dR}, v{vQ}",
            f"v_cvt_pk_bf16_f32 v{dM}, v{vS}, v{vS}")

    def stats_from_partials(self, base):
        t = []
        for step in (8, 4, 2, 1):
            for i in range(step):
                t.append(f"v_add_f32 v{base+i}, v{base+i}, v{base+i+step}")
        t.append(f"v_mov_b32 v{base+1}, v{base}")
        t.append(f"v_permlane32_swap_b32 v{base}, v{base+1}")
        return self.ops(*t) + self.stats_finish(base, base + 1, V_AUG, V_RS)

    def tr_lane(self, dst, tmp, pitch, hrows, cbstep):
        return self.ops(
            f"v_bfe_u32 v{dst}, v{V_L16}, 6, 2",
            f"v_lshrrev_b32 v{tmp}, 9, v{V_L16}",
            f"v_mad_u32_u24 v{dst}, v{tmp}, {hrows}, v{dst}",
            f"v_mul_u32_u24 v{dst}, {pitch}, v{dst}",
            f"v_bfe_u32 v{tmp}, v{V_L16}, 8, 1",
            f"v_mul_u32_u24 v{tmp}, {cbstep}, v{tmp}",
            f"v_add_u32 v{dst}, v{dst}, v{tmp}",
            f"v_bfe_u32 v{tmp}, v{V_L16}, 4, 2",
            f"v_lshl_add_u32 v{dst}, v{tmp}, 3, v{dst}")

    def hilo(self, dst, src):
        return self.ops(
            f"v_cvt_pk_bf16_f32 v{dst}, v{src}, v{src}",
            f"v_lshlrev_b32 v{dst}, 16, v{dst}",
            f"v_sub_f32 v{dst}, v{src}, v{dst}",
            f"v_cvt_pk_bf16_f32 v{dst}, v{src}, v{dst}")

    def prologue(self):
        a = self.a
        a.raw(f"; @launch grid=(256,1,1) block=(256,1,1) lds=163840")
        a.raw('.amdgcn_target "amdgcn-amd-amdhsa--gfx950"')
        a.raw(".text")
        a.raw(f".globl {KN}")
        a.raw(".p2align 8")
        a.raw(f".type {KN},@function")
        a.label(KN)
        a(f"s_load_dwordx16 {sr(S_P,16)}, s[0:1], 0")
        a(f"s_load_dwordx2 {sr(S_P+16,2)}, s[0:1], 72")
        a("s_cmp_ge_u32 s2, 256")
        a("s_cbranch_scc1 L_exit")
        a.ool.append("L_exit:\n s_endpgm")
        if self.stamps:
            self.stamp("start")
        a(f"v_lshrrev_b32 v1, 6, v0")
        a(f"v_and_b32 v0, 63, v0")
        a(f"v_readfirstlane_b32 s{S_W}, v1")
        a(f"v_lshlrev_b32 v{V_L16}, 4, v0")
        a(f"s_and_b32 s{S_XCD}, s2, 7")
        a(f"s_lshr_b32 s{S_R}, s2, 3")
        a(f"s_lshr_b32 s{S_G}, s{S_R}, 4")
        a(f"s_lshl1_add_u32 s{S_G}, s{S_XCD}, s{S_G}")
        a(f"s_and_b32 s{S_C}, s{S_R}, 15")
        a(f"s_lshl2_add_u32 s{S_TBW}, s{S_G}, s{S_W}")
        a(f"s_lshl_b32 s{S_W4K}, s{S_W}, 12")
        for srd, nb in ((SRD_WS, WS_BYTES), (SRD_X, 2048 * 1024), (SRD_WQ, 512 * 3072), (SRD_OUT, 2048 * 1024), (SRD_R1, 512 * 2752)):
            a(f"s_mov_b32 s{srd+2}, {nb}"); a(f"s_mov_b32 s{srd+3}, 0x20000")
        a(f"s_mov_b32 s{SRD_R0+3}, 0x20000")

    def late_scalars(self):
        a = self.a
        a(f"s_mul_i32 s{S_XBW}, s{S_TBW}, {XB_P}"); a(f"s_add_u32 s{S_XBW}, s{S_XBW}, {XB}")
        a(f"s_mul_i32 s{S_HBW}, s{S_TBW}, {HB_P}"); a(f"s_add_u32 s{S_HBW}, s{S_HBW}, {HB}")
        a(f"s_lshl_b32 s{S_FLW}, s{S_TBW}, 11"); a(f"s_add_u32 s{S_FLW}, s{S_FLW}, {FL}")
        a(f"s_lshr_b32 s{T0}, s{S_C}, 3"); a(f"s_lshl_b32 s{T0}, s{T0}, 1")
        a(f"s_lshl2_add_u32 s{T0}, s{S_G}, s{T0}")
        a(f"s_lshr_b32 s{S_QA}, s{S_W}, 1")
        a(f"s_add_u32 s{S_TBS}, s{T0}, s{S_QA}")
        a(f"s_xor_b32 s{S_TBO}, s{S_TBS}, 1")
        a(f"s_sub_u32 s{S_QB}, 3, s{S_QA}")
        a(f"s_and_b32 s{T0}, s{S_C}, 7"); a(f"s_and_b32 s{T0+1}, s{S_W}, 1")
        a(f"s_lshl1_add_u32 s{S_FB}, s{T0}, s{T0+1}")
        a(f"s_mov_b32 s{S_BUD}, 400000")
        a(f"s_mov_b32 s{S_E0}, 0x0000ffff"); a(f"s_mov_b32 s{S_E0+1}, 0x0000ffff")
        a(f"s_getreg_b32 s{S_HELLO}, hwreg(HW_REG_XCC_ID, 0, 4)")
        a(f"s_cmp_lt_u32 s{S_R}, 11"); a(f"s_cselect_b32 s{S_RPK}, 1, 0")
```

```python
from gen2_a import *

STG = [("a", A_STG + 4 * i) for i in range(4)]
AT_S = [V_X, V_X + 16]
AT_O = [V_X + 32, V_X + 48]
AT_P = V_X + 64
AT_K = [V_X + 72, V_X + 76]
AT_Q = [V_X + 80, V_X + 84]
AT_V = [V_ACC + 80, V_ACC + 88]
AT_MD, AT_MF = V_ACC + 48, V_ACC + 64
QX = G + 49152 + 2048


class QKV(Base):
    def wq_read(self, dst, k, blk, regs, rho_off):
        base = regs[k >> 4]
        off = (k & 15) * 3072 + blk * 1024
        d = int(dst[1]); f = ar if dst[0] == "a" else vr
        self.a(f"ds_read_b64_tr_b16 {f(d,2)}, v{base} offset:{off}")
        self.a(f"ds_read_b64_tr_b16 {f(d+2,2)}, v{base} offset:{off + rho_off}")

    def kv_epilogue_ops(self, L):
        a = self.a
        aK, aV = V_ACC, V_ACC + 16
        RV = V_ACC + 80
        AV = V_ACC + 76
        pre = self.ops(
            f"v_lshrrev_b32 v{V_T1}, 2, v{V_L16}",
            f"v_add_u32 v{V_T1}, s{S_W4K}, v{V_T1}",
            f"ds_write_b32 v{V_T1}, v{V_RS} offset:{G + 49152 + 512}",
            f"v_lshrrev_b32 v{V_T1}, 9, v{V_L16}",
            f"v_lshl_add_u32 v{V_T1}, v{V_T1}, 4, s{S_W4K}",
            *[f"ds_read_b128 {vr(RV+4*q,4)}, v{V_T1} offset:{G + 49152 + 512 + 32*q}" for q in range(4)],
            *[f"v_mov_b32 v{V_AUG+i}, 0" for i in (1, 2, 3)],
            *[f"v_mov_b32 v{AV+i}, 0" for i in (0, 2, 3)],
            f"v_mov_b32 v{AV+1}, v{V_AUG}")
        mid = [lambda: self.mfma(aK, vr(V_CS, 4), vr(V_AUG, 4)),
               lambda: self.mfma(aV, vr(AV, 4), vr(V_CS, 4))]
        ops = self.ops(
            f"v_mov_b32 v{V_AUG+2}, v{V_AUG}",
            f"v_mov_b32 v{V_AUG}, 0",
            f"s_lshl_b32 s{T0}, s{S_C}, 6", f"s_add_u32 s{T0}, s{T0}, s{S_TBW}", f"s_lshl_b32 s{T0}, s{T0}, 12",
            f"s_add_u32 s{T0}, s{T0}, {KV + L*0x400000}",
            f"v_add_u32 v31, s{S_W4K}, v{V_L16}")
        wr = []
        for part, acc in enumerate((aK, aV)):
            for hf in range(2):
                ops += self.ops(*[f"v_mul_f32 v{acc+8*hf+i}, v{V_RS if part == 0 else RV+8*hf+i}, v{acc+8*hf+i}" for i in range(8)])
                ops += self.ops(*[f"v_cvt_pk_bf16_f32 v{acc+8*hf+i}, v{acc+8*hf+2*i}, v{acc+8*hf+2*i+1}" for i in range(4)])
                o = (2 * part + hf) * 1024

                def st(o=o, r=acc + 8 * hf):
                    a.named["kv"] = a(f"buffer_store_dwordx4 {vr(r,4)}, v{V_L16}, {WS}, s{T0} offen offset:{o} sc1")
                ops.append(st)
                wr += self.ops(f"ds_write_b128 v31, {vr(acc+8*hf,4)} offset:{G + 32768 + o}")
        return pre, mid, ops, wr

    def mask_ops(self):
        t = 30
        x = [f"v_bfe_u32 v{t}, v{V_L16}, 4, 5", f"v_lshrrev_b32 v{V_T2}, 9, v{V_L16}", f"v_lshlrev_b32 v{V_T2}, 2, v{V_T2}",
             f"v_sub_u32 v{t}, v{t}, v{V_T2}", f"v_mov_b32 v{V_T2}, {NEG_BIG:#x}"]
        for r in range(17):
            if r < 16:
                x.append(f"v_cmp_le_i32 {sr(TA+10+2*(r%3),2)}, {8*(r>>2)+(r&3)}, v{t}")
            if r >= 1:
                q = r - 1; sq = sr(TA + 10 + 2 * (q % 3), 2)
                x.append(f"v_cndmask_b32 v{AT_MD+q}, v{V_T2}, 0, {sq}")
                x.append(f"v_cndmask_b32 v{AT_MF+q}, 0, v{V_T2}, {sq}")
        return self.ops(*x)

    def q_pass(self, L, trregs, rho_off, urgent, rest):
        a = self.a
        aQ = V_ACC + 32
        rest = rest + self.ops(*[f"v_mov_b32 v{AT_V[0]+i}, {ONES:#x}" for i in range(16)])
        for k in range(4):
            self.wq_read(STG[k], k, 0, trregs, rho_off)
        for k in range(32):
            self.mfma(aQ, ar(STG[k % 4][1], 4), vr(V_X + 4 * k, 4), "0" if k == 0 else None)
            if k + 4 < 32:
                self.wq_read(STG[k % 4], k + 4, 0, trregs, rho_off)
            self.stamp(f"q{L}_{k}", fine=True)
            if urgent:
                popn(urgent, self.P("q_urg", 8))
            else:
                popn(rest, -(-len(rest) // (32 - k)))
        flush(urgent); flush(rest)
        self.mfma(aQ, vr(V_CS, 4), vr(V_AUG, 4))
        a(f"v_mul_f32 v{V_RS}, {QSCALE:#x}, v{V_RS}")
        a(f"s_and_b32 s{T0}, s{S_W}, 1"); a(f"s_lshl_b32 s{T0+1}, s{T0}, 10"); a(f"s_lshl_b32 s{T0}, s{T0}, 8")
        a(f"v_add_u32 v28, s{T0+1}, v{V_L16}"); a(f"v_add_u32 v29, s{T0}, v{V_L16}")
        for hf in range(2):
            for r in range(8):
                a(f"v_mul_f32 v{aQ+8*hf+r}, v{V_RS}, v{aQ+8*hf+r}")
            for i in range(4):
                a(f"v_cvt_pk_bf16_f32 v{aQ+8*hf+i}, v{aQ+8*hf+2*i}, v{aQ+8*hf+2*i+1}")
            a(f"ds_write_b128 v31, {vr(aQ+8*hf,4)} offset:{QX + 1024*hf}")

    def qkv1(self):
        a = self.a
        aK, aV, aCS = V_ACC, V_ACC + 16, V_ACC + 48
        tmp = V_ACC + 32
        vX, vWQ, vW0, vW1, vR = tmp, tmp + 1, tmp + 2, tmp + 3, tmp + 4
        vCa, vCb, vGU = tmp + 8, tmp + 9, tmp + 10
        ones = vr(tmp + 12, 4)
        vTa, vTb = 28, 29
        SR = V_ACC + 64
        GR = V_ACC + 72
        RES = V_OWN + 8
        vPA, vPD, vSA = V_OWN, V_OWN + 1, V_OWN + 2
        sX, sWs, sWm, sXb = TA, TA + 1, TA + 2, TA + 3
        sWDo, sWDf = TA + 6, TA + 7
        self.lane(V_T1)
        a(f"v_and_b32 v{V_RS}, 0x200, v{V_L16}"); a(f"v_add_u32 v{V_RS}, v{V_RS}, v{V_L16}")
        a(f"v_lshrrev_b32 v{vX}, 3, v{V_T1}"); a(f"v_lshlrev_b32 v{vX}, 10, v{vX}")
        a(f"v_and_b32 v{V_T2}, 0x70, v{V_L16}"); a(f"v_add_u32 v{vX}, v{vX}, v{V_T2}")
        a(f"v_lshrrev_b32 v{vWQ}, 2, v{V_T1}"); a(f"v_mul_u32_u24 v{vWQ}, 3072, v{vWQ}")
        a(f"v_and_b32 v{V_T2}, 0x30, v{V_L16}"); a(f"s_lshl_b32 s{T0}, s{S_C}, 6")
        a(f"v_add3_u32 v{vWQ}, v{vWQ}, v{V_T2}, s{T0}")
        a(f"s_lshl4_add_u32 s{T0}, s{S_TBW}, s{S_C}"); a(f"s_lshl_b32 s{T0}, s{T0}, 11")
        a(f"s_lshr_b32 s{T0+1}, s2, 1"); a(f"s_and_b32 s{T0+2}, s2, 1"); a(f"s_lshl2_add_u32 s{T0+2}, s{T0+2}, s{S_W}")
        a.drain(lg=True)
        a(f"s_mov_b64 {sr(SRD_X,2)}, {sr(S_P+0,2)}")
        a(f"s_mov_b64 {sr(SRD_WQ,2)}, {sr(S_P+2,2)}")
        for j in range(2):
            a(f"buffer_load_dwordx4 {vr(SR+4*j,4)}, v{V_RS}, {sr(SRD_X,4)}, s{T0} offen offset:{512*j}")
        a(f"s_load_dword s{S_N}, {sr(S_P+16,2)}, {EPOCH}")
        a(f"s_mov_b64 {sr(SRD_WS,2)}, {sr(S_P+16,2)}")
        a(f"s_mov_b64 {sr(SRD_OUT,2)}, {sr(S_P+14,2)}")
        a(f"s_mov_b64 {sr(SRD_R1,2)}, {sr(S_P+8,2)}")
        a(f"s_lshl_b32 s{sXb}, s{S_TBW}, 15")
        a(f"s_mul_i32 s{sWs}, s{S_W}, {16*3072}")
        a(f"s_mul_i32 s{sWm}, s{S_W}, 3072"); a(f"s_add_u32 s{sWm}, s{sWm}, {WQ}")
        wtok = {}

        def chunk_ops(j):
            def x(i):
                if i: a(f"s_add_u32 s{sX}, s{sXb}, {8192*i}")
                a(f"buffer_load_dwordx4 {vr(V_X+16*j+4*i,4)}, v{vX}, {sr(SRD_X,4)}, s{sX if i else sXb} offen offset:{128*j}")

            def w(b):
                if b == 0:
                    a(f"s_add_u32 m0, s{sWm}, {j*4*3072}")
                wtok[j] = a(f"buffer_load_dwordx4 v{vWQ}, {sr(SRD_WQ,4)}, s{sWs} offen offset:{1024*b} lds")
                if b == 2:
                    a(f"s_add_u32 s{sWs}, s{sWs}, {64*3072}")
            return [lambda i=i: x(i) for i in range(4)] + [lambda b=b: w(b) for b in range(3)]
        INIT, AHEAD = self.P("init", 2), self.P("ahead", 3)
        flush(chunk_ops(0))
        a(f"s_cmp_lt_u32 s{T0+1}, 32")
        a(f"s_cselect_b64 {sr(SRD_R0,2)}, {sr(S_P+4,2)}, {sr(S_P+12,2)}")
        a(f"s_mov_b32 s{SRD_R0+2}, {1376*1024}")
        a(f"s_cselect_b32 s{SRD_R0+2}, {512*1024}, s{SRD_R0+2}")
        a(f"s_cselect_b32 s{T0+3}, 0, 32")
        a(f"s_sub_u32 s{T0+3}, s{T0+1}, s{T0+3}"); a(f"s_lshl_b32 s{T0+3}, s{T0+3}, 14")
        a(f"s_lshl_b32 s3, s{T0+2}, 7"); a(f"s_add_u32 s{T0+3}, s{T0+3}, s3")
        for i in range(2):
            a(f"s_add_u32 m0, s{S_W4K}, {G + 1024*i}")
            if i: a(f"s_add_u32 s{T0+3}, s{T0+3}, 8192")
            wd_raw = a(f"buffer_load_dwordx4 v{vX}, {sr(SRD_R0,4)}, s{T0+3} offen lds")
        a(f"s_mov_b64 {sr(SRD_R0,2)}, {sr(S_P+10,2)}"); a(f"s_mov_b32 s{SRD_R0+2}, {512*2752}")
        a(f"s_mul_i32 s{sWDo}, s{T0+2}, {PWD_P}"); a(f"s_lshl_b32 s3, s{T0+1}, 11")
        a(f"s_add_u32 s{sWDo}, s{sWDo}, s3"); a(f"s_add_u32 s{sWDo}, s{sWDo}, {PWD}")
        a(f"s_lshl3_add_u32 s{sWDf}, s{T0+1}, s{T0+2}"); a(f"s_lshl_b32 s{sWDf}, s{sWDf}, 7"); a(f"s_add_u32 s{sWDf}, s{sWDf}, {FRP_WD}")
        a(f"s_cmp_lt_u32 s{T0+1}, 118")
        a(f"s_cselect_b32 s{sWDo}, s{sWDo}, {OOB}"); a(f"s_cselect_b32 s{sWDf}, s{sWDf}, {OOB}")
        for j in range(1, INIT):
            flush(chunk_ops(j))
        self.late_scalars()
        a(f"v_lshrrev_b32 v{V_T2}, 4, v{V_T1}"); a(f"v_xor_b32 v{V_T2}, v{V_T1}, v{V_T2}")
        a(f"v_lshl_add_u32 v{vW0}, v{V_T2}, 4, s{S_W4K}")
        a(f"v_xor_b32 v{vW1}, 64, v{vW0}")
        a(f"v_bfe_u32 v{V_T2}, v{V_T1}, 1, 3"); a(f"v_lshrrev_b32 v{V_RS}, 5, v{V_T1}"); a(f"v_xor_b32 v{V_T2}, v{V_T2}, v{V_RS}")
        a(f"v_and_b32 v{V_RS}, 31, v{V_T1}"); a(f"v_lshlrev_b32 v{vSA}, 6, v{V_RS}"); a(f"v_lshlrev_b32 v{V_RS}, 7, v{V_RS}")
        a(f"v_lshl_add_u32 v{vR}, v{V_T2}, 4, v{V_RS}"); a(f"v_add_u32 v{vR}, s{S_W4K}, v{vR}")
        for s in range(1, 4):
            a(f"v_xor_b32 v{vR+s}, {32*s}, v{vR}")
        flush(self.tr_lane(vTa, V_T2, 64, 8, 32))
        a(f"v_add_u32 v{vTa}, {WQ}, v{vTa}"); a(f"v_add_u32 v{vTb}, 49152, v{vTa}")
        a(f"s_min_u32 s{T0}, s{S_W}, 2"); a(f"s_lshl_b32 s{T0}, s{T0}, 10")
        a(f"v_add_u32 v{vCa}, s{T0}, v{vTa}"); a(f"v_add_u32 v{vCb}, s{T0}, v{vTb}")
        for i in range(4):
            a(f"v_mov_b32 v{tmp+12+i}, {ONES:#x}")
        flush(self.tr_lane(30, V_T2, 128, 4, 32))
        a(f"v_add_u32 v30, s{S_W4K}, v30")
        a(f"v_lshrrev_b32 v{vGU}, 4, v{V_T1}"); a(f"v_mul_u32_u24 v{vGU}, 2752, v{vGU}")
        a(f"v_and_b32 v{V_T2}, 0xf0, v{V_L16}"); a(f"v_add_u32 v{vGU}, v{vGU}, v{V_T2}")
        a(f"s_lshl_b32 s{T0}, s{S_W}, 3")
        a(f"s_mul_i32 s{T0+1}, s{S_W}, 20"); a(f"s_add_u32 s{T0+1}, s{T0+1}, 24")
        a(f"v_add_u32 v{vPA}, s{T0}, v{V_T1}"); a(f"v_add_u32 v{vPD}, s{T0+1}, v{V_T1}")
        a(f"v_cmp_gt_u32 vcc, 8, v{V_T1}")
        a(f"s_add_u32 s{T0+2}, s{S_W}, 112"); a(f"s_and_b32 s{T0+3}, s{S_W}, 1"); a(f"s_add_u32 s{T0+3}, s{T0+3}, 116")
        a(f"v_cndmask_b32 v{vPA}, v{vPD}, v{vPA}, vcc")
        a(f"v_cmp_gt_u32 vcc, 28, v{V_T1}"); a(f"v_mov_b32 v{vPD}, s{T0+2}"); a(f"s_lshr_b32 s{T0}, s{S_FB}, 1")
        a(f"v_cndmask_b32 v{vPA}, v{vPD}, v{vPA}, vcc")
        a(f"v_cmp_gt_u32 vcc, 29, v{V_T1}"); a(f"v_mov_b32 v{vPD}, s{T0+3}"); a(f"s_lshl_b32 s{T0}, s{T0}, 7")
        a(f"v_cndmask_b32 v{vPA}, v{vPD}, v{vPA}, vcc")
        a(f"s_add_u32 s{T0}, s{T0}, {FRP_WD}"); a(f"v_lshl_add_u32 v{vPA}, v{vPA}, 10, s{T0}")
        a(f"s_lshl_b32 s{T0}, s{S_XCD}, 7"); a(f"s_add_u32 s{T0}, s{T0}, {HELLO}")
        a(f"v_cmp_gt_u32 vcc, 32, v{V_T1}"); a(f"v_lshl_add_u32 v{vPD}, v{vSA}, 4, s{T0}"); a.nop(1)
        a(f"v_cndmask_b32 v{vPA}, v{vPD}, v{vPA}, vcc")
        a(f"s_and_b32 s{S_N}, s{S_N}, 0xfffffff0"); a(f"s_add_u32 s{S_N}, s{S_N}, 0x9e3779b0")
        a(f"s_or_b32 s{S_HELLO}, s{S_HELLO}, s{S_N}")
        s_, q_ = V_AUG, V_AUG + 2
        a(f"v_mov_b32 v{s_}, 0"); a(f"v_mov_b32 v{q_}, 0")
        for i in range(8):
            a(f"v_dot2_f32_bf16 v{s_}, v{SR+i}, v{tmp+12}, v{s_}")
            a(f"v_dot2_f32_bf16 v{q_}, v{SR+i}, v{SR+i}, v{q_}")
        a.nop(3)
        for d in ("quad_perm:[1,0,3,2]", "quad_perm:[2,3,0,1]", "row_half_mirror", "row_mirror"):
            for r in (s_, q_):
                a(f"v_add_f32_dpp v{r}, v{r}, v{r} {d} row_mask:0xf bank_mask:0xf")
        for r in (s_, q_):
            a(f"v_mov_b32 v{r+1}, v{r}")
        for r in (s_, q_):
            a(f"v_permlane16_swap_b32 v{r}, v{r+1}")
        for r in (s_, q_):
            a(f"v_add_f32 v{r}, v{r}, v{r+1}")
        flush(self.stats_finish(s_, q_, GR, GR + 2))
        a(f"v_mov_b32 v{GR+1}, s{S_N}"); a(f"v_mov_b32 v{GR+3}, s{S_N}")
        a(f"v_lshrrev_b32 v{V_T2}, 9, v{V_L16}"); a(f"v_and_b32 v{V_RS}, 0x30, v{V_L16}"); a(f"v_lshl_add_u32 v{V_T2}, v{V_T2}, 6, v{V_RS}")
        a(f"s_lshl4_add_u32 s{T0}, s{S_TBW}, s{S_C}"); a(f"s_lshl_b32 s{T0}, s{T0}, 7"); a(f"s_add_u32 s{T0}, s{T0}, {SX}")
        a("s_mov_b32 exec_lo, 15"); a("s_mov_b32 exec_hi, 15")
        a(f"buffer_store_dwordx4 {vr(GR,4)}, v{V_T2}, {WS}, s{T0} offen sc1")
        self.full_exec()
        a(f"s_lshl_b32 s{T0}, s2, 7"); a(f"s_add_u32 s{T0}, s{T0}, {HELLO}")
        a(f"s_cmp_eq_u32 s{S_W}, 0"); a(f"s_cselect_b32 s{T0}, s{T0}, {OOB}")
        self.flag_line(f"s{T0}", val=S_HELLO)
        self.stamp("st1")

        def touch():
            a(f"s_mul_i32 s{T0}, s{S_TBS}, {XB_P}"); a(f"s_lshl_b32 s{T0+1}, s{S_FB}, 8"); a(f"s_add_u32 s{T0}, s{T0}, s{T0+1}")
            a(f"s_add_u32 s{T0}, s{T0}, {XB + 32768 - 128}")
            a(f"s_lshl_b32 s{T0+1}, s{S_C}, 7"); a(f"s_add_u32 s{T0+1}, s{T0+1}, s{S_FLW}")
            a(f"v_lshl_add_u32 v{V_T1}, v{V_L16}, 3, s{T0}")
            a(f"v_writelane_b32 v{V_T1}, s{T0+1}, 0")
            a("s_mov_b64 exec, 7")
            a(f"buffer_load_dword v{V_AUG}, v{V_T1}, {WS}, 0 offen")
            if not self.P("nocodepf", 0):
                a(f"s_getpc_b64 {sr(T0+2,2)}")
                a.label("L_pc")
                a(f"s_lshl2_add_u32 s{T0}, s{S_R}, s{S_W}"); a(f"s_lshl_b32 s{T0}, s{T0}, 9")
                a("s_mov_b64 exec, 15")
                a(f"v_lshl_add_u32 v{V_T1}, v{V_L16}, 3, s{T0}")
                a(f"v_min_u32 v{V_T1}, L_codeend-L_pc-4, v{V_T1}")
                a(f"global_load_dword v{V_AUG+1}, v{V_T1}, {sr(T0+2,2)}")
            self.full_exec()

        def wd_process():
            ops = []
            for i in range(2):
                for rho in range(2):
                    ops += self.ops(f"ds_read_b64_tr_b16 {vr(SR+4*i+2*rho,2)}, v30 offset:{G + 1024*rho + 64*i}")

            def st(i):
                a.named["wd"] = a(f"buffer_store_dwordx4 {vr(SR+4*i,4)}, v{V_L16}, {WS}, s{sWDo} offen offset:{1024*i} sc1")
            return [lambda: a.wait(wd_raw)] + ops, [lambda: st(0), lambda: st(1)]

        def late_loads():
            ops = []

            def gran():
                a(f"s_lshl_b32 s{TA+4}, s{S_TBW}, 11"); a(f"s_add_u32 s{TA+4}, s{TA+4}, {SX}")
                self.poll_issue(vSA, f"s{TA+4}", GR, wide=True)
            ops.append(gran)
            ops.append(lambda: self.poll_issue(vPA, "0", vPD))

            def res(s):
                if s == 0:
                    a(f"v_lshrrev_b32 v{V_T1}, 9, v{V_L16}"); a(f"v_lshlrev_b32 v{V_T1}, 4, v{V_T1}")
                    a(f"v_lshl_add_u32 v{V_T1}, v{vSA}, 4, v{V_T1}")
                    a(f"s_lshl_b32 s{T0}, s{S_TBS}, 15"); a(f"s_lshl_b32 s{T0+1}, s{S_FB}, 6"); a(f"s_add_u32 s{T0}, s{T0}, s{T0+1}")
                a(f"buffer_load_dwordx4 {vr(RES+4*s,4)}, v{V_T1}, {sr(SRD_X,4)}, s{T0} offen offset:{32*s}")
            ops += [lambda: (res(0), res(1))]

            def gu(m, i):
                if (m, i) == (0, 0):
                    a(f"s_lshl2_add_u32 s{sX}, s{S_XCD}, s{S_W}"); a(f"s_mul_i32 s{sX}, s{sX}, {16*2752}")
                    a(f"s_lshl_b32 s3, s{S_C}, 8"); a(f"s_add_u32 s{sX}, s{sX}, s3")
                    a(f"s_cmp_lg_u32 s{S_RPK}, 0"); a(f"s_cselect_b32 s{sX}, s{sX}, {OOB}")
                a(f"s_add_u32 m0, s{S_W4K}, {G + 16384*m + 1024*i}")
                a(f"s_add_u32 s3, s{sX}, {4*i*2752}")
                a.named["gu_raw"] = a(f"buffer_load_dwordx4 v{vGU}, {sr(SRD_R0 if m else SRD_R1,4)}, s3 offen lds")
            ops += [lambda m=m, i=i: gu(m, i) for m in range(2) for i in range(4)]
            return ops

        flagged = [False]

        def open_chunk(j):
            for i in range(4):
                a(f"ds_write_b128 v{vW1 if i & 1 else vW0}, {vr(V_X+16*j+4*i,4)} offset:{G + 32768 + 1024*i}")
            for s in range(4):
                a(f"ds_read_b128 {vr(V_X+16*j+4*s,4)}, v{vR+s} offset:{G + 32768}")
            a.wait(wtok[j])
            a("s_barrier")
            self.stamp(f"ch{j}", fine=True)
            if not flagged[0] and "wd" in a.named and a.named["wd"].done:
                self.flag_line(f"s{sWDf}")
                flagged[0] = True
        nfr = 96

        def rd(n):
            k, b = divmod(n, 3)
            if b == 0 and k % 4 == 0:
                open_chunk(k // 4)
            if b == 2:
                self.wq_read(STG[n % 4], k, 0, (vCa, vCb), 256)
            else:
                self.wq_read(STG[n % 4], k, 1 + b, (vTa, vTb), 256)
        for n in range(4): rd(n)
        loads = []
        nxt = INIT
        fill = []
        for n in range(nfr):
            k, b = divmod(n, 3)
            if n % 12 == 0:
                j = n // 12
                if j == 0:
                    r_, s_ops = wd_process()
                    fill = r_
                if j == 1:
                    loads += s_ops + [touch]
                while nxt <= min(j + AHEAD, 7):
                    loads += chunk_ops(nxt); nxt += 1
                    if nxt == 8: loads += late_loads()
            W = ar(STG[n % 4][1], 4); X = vr(V_X + 4 * k, 4)
            c0 = "0" if k == 0 else None
            if b == 0:
                self.mfma(aK, W, X, c0)
            elif b == 1:
                self.mfma(aV, X, W, c0)
            else:
                self.mfma(aCS, ones, W, c0)
            popn(loads, 2 if len(loads) > 8 - n % 12 else 1)
            if n % 12 >= 6: popn(fill, 1)
            if n + 4 < nfr: rd(n + 4)
        assert flagged[0] and not loads and not fill
        self.stamp("kv1")
        self.poll_check(vSA, f"s{TA+4}", GR, "gran", V_T1)
        a(f"v_mov_b32 v{V_AUG}, v{GR}"); a(f"v_mov_b32 v{V_RS}, v{GR+2}")
        pre, mid, post, wr = self.kv_epilogue_ops(0)
        flush(pre)
        a(f"v_lshrrev_b32 v{V_T1}, 2, v{V_L16}"); a(f"v_add_u32 v30, s{S_W4K}, v{V_T1}")
        a(f"v_cmp_gt_u32 vcc, 128, v{V_T1}")
        flush(self.hilo(V_T2, aCS))
        a(f"v_cndmask_b32 v{V_T2}, 0, v{V_T2}, vcc")
        t = a(f"ds_write_b32 v30, v{V_T2} offset:{G + 49152}")
        a(f"v_mov_b32 v{V_CS+3}, 0")
        a.wait(t)
        a("s_barrier")
        a(f"ds_read_b32 v{V_CS}, v{V_T1} offset:{G + 49152 + 4096}")
        a(f"ds_read_b32 v{V_CS+1}, v{V_T1} offset:{G + 49152 + 8192}")
        a(f"ds_read_b32 v{V_CS+2}, v{V_T1} offset:{G + 49152}")

        def side():
            self.poll_check(vPA, "0", vPD, "mask", V_T1)
            a(f"v_cmp_ne_u32 vcc, s{S_HELLO}, v{vPD}")
            a(f"s_mov_b32 s{S_MODE}, {'1' if self.force_slow else 'vcc_hi'}")
        unp = self.ops(*[f"v_permlane32_swap_b32 v{RES+4*s+i}, v{RES+4*s+2+i}" for s in range(2) for i in range(2)])
        for i in range(8):
            unp += self.ops(f"v_lshlrev_b32 v{V_OWN+2*i}, 16, v{RES+i}", f"v_and_b32 v{V_OWN+2*i+1}, 0xffff0000, v{RES+i}")
        self.wl = self.w_loads()
        n1 = self.P("w1", 8)
        w1, self.wl_done = self.wl[:n1], n1
        rest = [side] + unp
        m = self.mask_ops()
        extra = [x for p in zip(wr + [None] * n1, w1 + [None] * 4) for x in p if x]
        step = max(1, len(m) // max(1, len(extra)))
        while m:
            if extra: rest.append(extra.pop(0))
            rest += m[:step]; m = m[step:]
        rest += extra
        self.q_pass(0, (vTa, vTb), 256, mid + post, rest)
        self.stamp("q1")

    def qkv2(self):
        a = self.a
        aK, aV = V_ACC, V_ACC + 16
        vTa, vTb = 28, 29
        ST = V_ACC + 48
        a(f"v_bfe_u32 v{V_T1}, v{V_L16}, 2, 6")
        a(f"s_add_u32 s{T0}, s{S_FLW}, {4*128}")
        self.poll(V_T1, f"s{T0}", V_T2)
        self.stamp("x2poll")
        sX = TA
        a(f"s_mov_b32 s{sX}, s{S_XBW}")

        def xl(k):
            a(f"buffer_load_dwordx4 {vr(V_X+4*k,4)}, v{V_L16}, {WS}, s{sX} offen offset:{(k&3)*1024} sc1")
            if k & 3 == 3: a(f"s_add_u32 s{sX}, s{sX}, 4096")
        loads = [lambda k=k: xl(k) for k in range(32)]
        stl = self.ops(*[f"buffer_load_dwordx4 {vr(ST+4*q,4)}, v{V_L16}, {WS}, s{sX+1} offen offset:{q*1024} sc1" for q in range(4)])
        loads = loads[:12] + stl + loads[12:]
        popn(loads, 4)
        a(f"s_add_u32 s{sX+1}, s{S_XBW}, 32768")
        flush(self.tr_lane(vTa, V_T2, 64, 4, 32))
        a(f"v_add_u32 v{vTa}, {WQ}, v{vTa}"); a(f"v_add_u32 v{vTb}, 49152, v{vTa}")
        pre, mid, post, wr = self.kv_epilogue_ops(1)
        fill = self.stats_from_partials(ST) + pre
        rd = lambda n: self.wq_read(STG[n % 4], n >> 1, 1 + (n & 1), (vTa, vTb), 512)
        for n in range(4): rd(n)
        popn(loads, self.P("kv_pre", 8) - 4)
        for n in range(64):
            k, b = divmod(n, 2)
            W = ar(STG[n % 4][1], 4); X = vr(V_X + 4 * k, 4)
            c0 = "0" if k == 0 else None
            if b == 0: self.mfma(aK, W, X, c0)
            else: self.mfma(aV, X, W, c0)
            if b == 0: popn(loads)
            self.stamp(f"kv2_{n}", fine=True)
            if n + 4 < 64: rd(n + 4)
            if n >= 32: popn(fill, 2)
        flush(fill)
        self.stamp("kv2")
        m = self.mask_ops()
        rest = []
        for i in range(4):
            rest += [wr[i]] + m[8 * i:8 * i + 8]
        rest += m[32:]
        self.q_pass(1, (vTa, vTb), 512, mid + post, rest)
        self.stamp("q2")

    def w_loads(self):
        a = self.a
        sA, sB, sC = TA + 16, TA + 17, TA + 9

        def setup(unit_expr):
            unit_expr()
            a(f"s_lshl_b32 s{sA}, s{sA}, 11")
            a(f"s_add_u32 s{sA}, s{sA}, s{sC}")
            a(f"s_xor_b32 s{sB}, s{sA}, 1024")

        def base():
            a(f"s_lshr_b32 s{sC}, s{S_FB}, 1"); a(f"s_mul_i32 s{sC}, s{sC}, {PWD_P}")
            a(f"s_and_b32 s{sA}, s{S_FB}, 1"); a(f"s_lshl_b32 s{sA}, s{sA}, 10")
            a(f"s_add_u32 s{sC}, s{sC}, s{sA}"); a(f"s_add_u32 s{sC}, s{sC}, {PWD}")

        def ld(areg, i, which, first=None):
            if first: first()
            a(f"buffer_load_dwordx4 {ar(areg,4)}, v{V_L16}, {WS}, s{sB if which else sA} offen offset:{(i&1)*2048} sc1")
            if (i & 1) and which:
                a(f"s_add_u32 s{sA}, s{sA}, 4096"); a(f"s_add_u32 s{sB}, s{sB}, 4096")

        def f_wo():
            base(); setup(lambda: a(f"s_lshl_b32 s{sA}, s{S_W}, 3"))

        def f_wd():
            setup(lambda: (a(f"s_mul_i32 s{sA}, s{S_W}, 20"), a(f"s_add_u32 s{sA}, s{sA}, 32")))

        def f_e0():
            setup(lambda: a(f"s_add_u32 s{sA}, s{S_W}, 112"))

        def f_e1():
            setup(lambda: a(f"s_add_u32 s{sA}, s{S_W}, 116"))
            a(f"s_cmp_lt_u32 s{S_W}, 2")
            a(f"s_cselect_b32 s{sA}, s{sA}, {OOB}"); a(f"s_cselect_b32 s{sB}, s{sB}, {OOB}")
        out = []
        for i in range(8):
            for which in range(2):
                out.append(lambda i=i, which=which: ld(A_WO + 8 * i + 4 * which, i, which, f_wo if (i, which) == (0, 0) else None))
        for i in range(20):
            for which in range(2):
                out.append(lambda i=i, which=which: ld(A_WD + 8 * i + 4 * which, i, which, f_wd if (i, which) == (0, 0) else None))
        for e, f in enumerate((f_e0, f_e1)):
            for which in range(2):
                out.append(lambda e=e, which=which, f=f: ld(A_WD + 160 + 8 * e + 4 * which, 0, which, f if which == 0 else None))
        return out
```

```python
from gen2_b import *

OWN_T = {0: [(8, 0, "D"), (8, 1, ""), (9, 1, ""), (10, 1, ""), (11, 1, "D")],
         1: [(8, 0, ""), (8, 1, ""), (9, 0, "D"), (9, 1, ""), (10, 1, "D")]}
MID_T = [(b, q, "") for b in (7, 6, 5, 4) for q in (0, 1)]
FAR_T = {0: [(3, 0, ""), (3, 1, "F"), (2, 0, ""), (1, 0, ""), (0, 0, "F")],
         1: [(3, 0, ""), (3, 1, ""), (2, 0, ""), (2, 1, "F"), (1, 0, "F")]}


class ATT(QKV):
    def tiles(self, tl, started, hook, first=None):
        a = self.a
        n = len(tl)
        blocks = []
        for b, _, _ in tl:
            if not blocks or blocks[-1] != b: blocks.append(b)
        bidx = [blocks.index(b) for b, _, _ in tl]

        def rdK(j):
            if j < len(blocks):
                a(f"ds_read_b128 {vr(AT_K[j&1],4)}, v28 offset:{G + blocks[j]*4096}")

        def rdV(j):
            if j < len(blocks):
                a(f"s_mov_b64 exec, {sr(S_E0,2)}")
                a(f"ds_read_b128 {vr(AT_V[j&1],4)}, v29 offset:{G + blocks[j]*4096 + 2048}")
                a(f"ds_read_b128 {vr(AT_V[j&1]+4,4)}, v29 offset:{G + blocks[j]*4096 + 3072}")
                self.full_exec()

        def qk(i):
            c = {"D": vr(AT_MD, 16), "F": vr(AT_MF, 16), "": "0"}[tl[i][2]]
            self.mfma(AT_S[i & 1], vr(AT_K[bidx[i] & 1], 4), vr(AT_Q[tl[i][1]], 4), c)
            if i + 1 == n or bidx[i + 1] != bidx[i]:
                rdK(bidx[i] + 2)

        def pv(i, s):
            q = tl[i][1]
            c = None
            if q not in started:
                started.add(q); c = "0"
            self.mfma(AT_O[q], vr(AT_V[bidx[i] & 1] + 4 * s, 4), vr(AT_P + 4 * s, 4), c)
        self.pv_pending = pv
        rdK(0); rdK(1); rdV(0)
        if first: first()
        qk(0)
        for i in range(n):
            s = AT_S[i & 1]
            ex = lambda r: a(f"v_exp_f32 v{s+r}, v{s+r}")
            cv = lambda j: a(f"v_cvt_pk_bf16_f32 v{AT_P+j}, v{s+2*j}, v{s+2*j+1}")
            if i == 0 and n > 1: qk(1)
            ex(0); ex(1)
            if i >= 1: pv(i - 1, 1)
            if i == 0 or bidx[i] != bidx[i - 1]: rdV(bidx[i] + 1)
            ex(2); cv(0); ex(3); ex(4); cv(1)
            if 1 <= i and i + 1 < n: qk(i + 1)
            ex(5); ex(6); cv(2); ex(7); ex(8); cv(3); ex(9); ex(10)
            pv(i, 0)
            hook(i, "mid")
            cv(4); ex(11); ex(12); cv(5); ex(13); ex(14); ex(15); cv(6); cv(7)
            hook(i, "end")
        pv(n - 1, 1)

    def gu_repack(self):
        a = self.a
        F = V_X + 96
        one = V_X + 88
        flush(self.tr_lane(V_T1, V_T2, 256, 4, 16384))
        a(f"s_lshl_b32 s{T0}, s{S_W}, 6"); a(f"v_add_u32 v{V_T1}, s{T0}, v{V_T1}")
        for bb in range(2):
            for ks in range(4):
                for rho in range(2):
                    a(f"ds_read_b64_tr_b16 {vr(F+16*bb+4*ks+2*rho,2)}, v{V_T1} offset:{G + (16*ks+8*rho)*256 + 32*bb}")
        for i in range(4):
            a(f"v_mov_b32 v{one+i}, {ONES:#x}")
        a(f"v_lshrrev_b32 v{V_T1}, 2, v{V_L16}")
        for bb in range(2):
            a(f"s_lshl2_add_u32 s{T0}, s{S_C}, s{S_W}"); a(f"s_lshl1_add_u32 s{T0}, s{T0}, {bb}")
            a(f"s_mul_i32 s{T0+1}, s{T0}, 52429"); a(f"s_lshr_b32 s{T0+1}, s{T0+1}, 18")
            a(f"s_mul_i32 s{T0+2}, s{T0+1}, 5"); a(f"s_sub_u32 s{T0+2}, s{T0}, s{T0+2}")
            a(f"s_sub_u32 s{T0+3}, s{T0}, 80")
            a(f"s_cmp_lt_u32 s{T0}, 80")
            a(f"s_cselect_b32 s{T0+1}, s{T0+1}, s{T0+3}")
            a(f"s_cselect_b32 s{T0+2}, s{T0+2}, 165")
            a(f"s_cselect_b32 s{T0+3}, 5, 1"); a(f"s_lshl_b32 s{T0+3}, s{T0+3}, 10")
            a(f"s_mul_i32 s{T0+1}, s{T0+1}, {PGU_P}"); a(f"s_lshl_b32 s{T0+2}, s{T0+2}, 10")
            a(f"s_add_u32 s{T0+1}, s{T0+1}, s{T0+2}"); a(f"s_add_u32 s{T0+1}, s{T0+1}, {PGU}")
            a(f"s_cmp_lt_u32 s{T0}, 86"); a(f"s_cselect_b32 s{T0+1}, s{T0+1}, {OOB}")
            a(f"s_lshl_b32 s{TA+bb}, s{T0+3}, 5"); a(f"s_add_u32 s{TA+bb}, s{TA+bb}, s{T0+1}")
            a(f"s_lshl_b32 s{T0+2}, s{S_XCD}, 7"); a(f"s_add_u32 s{TA+bb}, s{TA+bb}, s{T0+2}")
            a(f"s_lshl_b32 s{T0+2}, s{S_XCD}, 2"); a(f"s_mul_i32 s{T0+2}, s{T0+2}, s{T0+3}")
            a(f"s_add_u32 s{T0+1}, s{T0+1}, s{T0+2}")
            for ks in range(4):
                fr = vr(F + 16 * bb + 4 * ks, 4)
                self.mfma(V_ACC + 16 * bb, vr(one, 4), fr, "0" if ks == 0 else None)
                a(f"buffer_store_dwordx4 {fr}, v{V_L16}, {WS}, s{T0+1} offen sc1")
                a(f"s_add_u32 s{T0+1}, s{T0+1}, s{T0+3}")
        for bb in range(2):
            flush(self.hilo(V_T2, V_ACC + 16 * bb))
            a("s_mov_b32 exec_hi, 0")
            a(f"buffer_store_dword v{V_T2}, v{V_T1}, {WS}, s{TA+bb} offen sc1")
            a("s_mov_b32 exec_hi, -1")

    def attention(self, L):
        a = self.a
        sKF, sHF, sHD = TA + 2, TA + 3, TA + 4
        vHA, vHD = 30, 31
        a(f"s_lshl4_add_u32 s{sKF}, s{S_TBW}, s{S_C}"); a(f"s_lshl_b32 s{sKF}, s{sKF}, 7")
        a(f"s_add_u32 s{sKF}, s{sKF}, {FKV + L*0x20000}")
        a(f"s_sub_u32 s{sHF}, s{sKF}, {8*16*128}")
        a(f"s_cmp_ge_u32 s{S_G}, 2"); a(f"s_cselect_b32 s{T0}, 0, 8192")
        a(f"v_and_b32 v{vHA}, 0x200, v{V_L16}"); a(f"v_lshlrev_b32 v{vHA}, 4, v{vHA}"); a(f"v_or_b32 v{vHA}, s{T0}, v{vHA}")
        a(f"s_cmp_eq_u32 s{S_G}, 0"); a(f"s_cselect_b32 s{sHF}, {OOB}, s{sHF}")
        a(f"s_lshl_b32 s{sHD}, s{S_C}, 6"); a(f"s_add_u32 s{sHD}, s{sHD}, s{S_TBW}"); a(f"s_lshl_b32 s{sHD}, s{sHD}, 12")
        a(f"s_add_u32 s{sHD}, s{sHD}, {KV + L*0x400000 - 4*4096}")
        if L == 0: a.wait(a.named["gu_raw"])
        a.drain(lg=True)
        a("s_barrier")
        self.stamp(f"bA{L}")
        if L == 0:
            Lr = a.newlabel("rpk"); Lb = a.newlabel("rpkb")
            a(f"s_cmp_lg_u32 s{S_RPK}, 0"); a(f"s_cbranch_scc1 {Lr}")
            a.label(Lb)
            k = a.begin_ool()
            a.label(Lr)
            self.gu_repack()
            self.flag_line(f"s{sKF}", [a.named["kv"]])
            a(f"s_mov_b32 s{sKF}, {OOB}")
            a.nop(8)
            a(f"s_branch {Lb}")
            a.end_ool(k)
        Lp1 = a.newlabel("p1"); Lep = a.newlabel("aepi")
        a(f"s_cmp_lg_u32 s{S_QA}, 0"); a(f"s_cbranch_scc1 {Lp1}")
        nst0 = self.nst
        for p in (1, 0):
            self.nst = nst0
            if p == 1:
                keep = a.begin_ool()
                a.label(Lp1)
            bg = self.att_bg(L)
            started = set()

            def first():
                for q, blk in enumerate((p, 3 - p)):
                    a(f"ds_read_b128 {vr(AT_Q[q],4)}, v28 offset:{QX + 4096*blk}")

            def hook1(i, where):
                if where == "end": self.stamp(f"t{L}_{i}", fine=True)
                if where == "end" and i == self.P("kvflag", 0):
                    if L == 0:
                        Ls = a.newlabel("kvf")
                        a(f"s_cmp_lg_u32 s{S_RPK}, 0"); a(f"s_cbranch_scc1 {Ls}")
                        self.flag_line(f"s{sKF}", [a.named["kv"]], maybe=True)
                        a.label(Ls)
                    else:
                        self.flag_line(f"s{sKF}", [a.named["kv"]])
                    popn(bg["early"], len(bg["early"]))
                if where == "mid" and i == self.P("hpoll", 4):
                    self.poll_issue(vHA, f"s{sHF}", vHD)
            self.tiles(OWN_T[p], started, hook1, first)
            self.stamp(f"own{L}")
            Lx0 = a.newlabel("x0")
            if L == 0:
                a("s_barrier")
            a(f"s_cmp_eq_u32 s{S_G}, 0"); a(f"s_cbranch_scc1 {Lx0}")
            k = a.begin_ool()
            a.label(Lx0)
            self.att_leave(L, bg, True)
            a(f"s_branch {Lep}")
            a.end_ool(k)
            self.poll_check(vHA, f"s{sHF}", vHD)
            self.stamp(f"hp{L}", fine=True)
            a(f"s_add_u32 m0, s{S_W4K}, {G + 16384}")
            a(f"s_sub_u32 s{T0}, s{sHD}, {4*4096}")
            for i in range(4):
                a(f"buffer_load_dwordx4 v{V_L16}, {WS}, s{sHD} offen offset:{1024*i} sc1 lds")
            a(f"s_cmp_ge_u32 s{S_G}, 2"); a(f"s_cselect_b32 s{T0}, s{T0}, {OOB}")
            a(f"s_add_u32 m0, s{S_W4K}, {G}")
            for i in range(4):
                t = a(f"buffer_load_dwordx4 v{V_L16}, {WS}, s{T0} offen offset:{1024*i} sc1 lds")
            if L == 0: self.gu_flag()
            popn(bg["stall"], len(bg["stall"]))
            a.wait(t)
            a("s_barrier")
            self.stamp(f"halo{L}")

            def hook2(i, where):
                if where == "end": self.stamp(f"t{L}_{i+5}", fine=True)
                if where == "mid":
                    for op in bg["at"].get(i, []): op()
                    bg["at"].pop(i, None)
                if where == "end" and i == 7:
                    Lx1 = a.newlabel("x1")
                    a(f"s_cmp_eq_u32 s{S_G}, 1"); a(f"s_cbranch_scc1 {Lx1}")
                    k = a.begin_ool()
                    a.label(Lx1)
                    a.drain(lg=True, force=True)
                    self.pv_pending(7, 1)
                    self.att_leave(L, bg, False)
                    a(f"s_branch {Lep}")
                    a.end_ool(k)
            self.tiles(MID_T + FAR_T[p], started, hook2)
            assert not bg["at"]
            if p == 1:
                a(f"s_branch {Lep}")
                a.end_ool(keep)
        a.label(Lep)
        a(f"s_and_b32 s{T0}, s{S_W}, 1"); a(f"s_lshl1_add_u32 s{T0}, s{S_C}, s{T0}")
        for q, sq in enumerate((S_QA, S_QB)):
            a(f"s_lshl2_add_u32 s{TA+q}, s{S_G}, s{sq}")
            a(f"s_mul_i32 s{TA+2+q}, s{TA+q}, {HB_P >> 10}"); a(f"s_add_u32 s{TA+2+q}, s{TA+2+q}, s{T0}")
            a(f"s_lshl_b32 s{TA+2+q}, s{TA+2+q}, 10"); a(f"s_add_u32 s{TA+2+q}, s{TA+2+q}, {HB}")
            a(f"s_lshl_b32 s{TA+6+q}, s{TA+q}, 11"); a(f"s_lshl2_add_u32 s{TA+6+q}, s{T0}, s{TA+6+q}")
            a(f"s_add_u32 s{TA+6+q}, s{TA+6+q}, {FL + (8*L+0)*128}")
        toks = []
        for q in (1, 0):
            ov = AT_O[q]; lv = AT_O[q] + 8
            Lfb = a.newlabel("fb"); Lbk = a.newlabel("fbret")
            a(f"v_subrev_u32 v{V_RS}, 0x2b800000, v{lv}")
            a(f"v_cmp_lt_u32 vcc, {0 if self.force_fallback else 0x28000000}, v{V_RS}")
            a(f"s_cbranch_vccnz {Lfb}")
            a.label(Lbk)
            self.fallback(Lfb, Lbk, q)
            a(f"v_rcp_f32 v{V_RS}, v{lv}")
            for r in range(0, 8, 2):
                a(f"v_pk_mul_f32 {vr(ov+r,2)}, {vr(V_RS-1,2)}, {vr(ov+r,2)} op_sel:[1,0]")
            for j in range(4):
                a(f"v_cvt_pk_bf16_f32 v{ov+j}, v{ov+2*j}, v{ov+2*j+1}")
            toks.append(a(f"buffer_store_dwordx4 {vr(ov,4)}, v{V_L16}, {WS}, s{TA+2+q} offen {self.dsc(L,'o')}"))
        self.narrow_poll_addr(L, False)
        self.flag_local([f"s{TA+6}", f"s{TA+7}"], toks)
        self.stamp(f"att{L}")

    def gu_flag(self):
        a = self.a
        a(f"s_lshl2_add_u32 s{T0}, s{S_C}, s{S_W}"); a(f"s_lshl3_add_u32 s{T0}, s{T0}, s{S_XCD}")
        a(f"s_lshl_b32 s{T0}, s{T0}, 7"); a(f"s_add_u32 s{T0}, s{T0}, {FRP_GU}")
        a(f"s_cmp_lg_u32 s{S_RPK}, 0"); a(f"s_cselect_b32 s{T0}, s{T0}, {OOB}")
        self.flag_line(f"s{T0}")

    def att_leave(self, L, bg, first):
        a = self.a
        if first:
            a.drain(vm=True, force=True)
            if L == 0: self.gu_flag()
            if L == 1: self.epoch_update()
            a("s_barrier")
            for op in bg["stall"]: op()
        for i in sorted(bg["at"]):
            for op in bg["at"][i]: op()
        a.nop(12)

    def att_bg(self, L):
        bg = {"early": [], "stall": [], "at": {}}
        if L == 0:
            wl = self.w_loads()[self.wl_done:]
            n2, n3 = self.P("w2", 8), self.P("w3", 8)
            bg["early"], bg["stall"], wl = wl[:n2], wl[n2:n2 + n3], wl[n2 + n3:]
            last = self.P("wlast", 10)
            for i in range(last + 1):
                n = -(-len(wl) // (last + 1 - i))
                bg["at"][i], wl = wl[:n], wl[n:]
            g0 = self.P("gupoll", 7)
            bg["at"][g0] = [self.gu_poll_issue] + bg["at"].get(g0, [])
            bg["at"][g0 + 3] = bg["at"].get(g0 + 3, []) + [self.gu_poll_check] + self.ring1_fill(0) + self.ring1_fill(1)
        else:
            f = self.ring2_fill(0, 112)
            n3 = self.P("r3", 4)
            bg["stall"], f = f[:n3], f[n3:]
            last = self.P("rlast", 9)
            for i in range(last + 1):
                n = -(-len(f) // (last + 1 - i))
                bg["at"][i], f = f[:n], f[n:]
        return bg

    def gu_poll_issue(self):
        a = self.a
        a(f"s_mul_i32 s{T0}, s{S_C}, 5"); a(f"s_lshr_b32 s{T0}, s{T0}, 1"); a(f"s_lshl_b32 s{T0}, s{T0}, 10")
        a(f"s_min_u32 s{T0+1}, s{S_C}, 5"); a(f"s_add_u32 s{T0+1}, s{T0+1}, 74"); a(f"s_lshr_b32 s{T0+1}, s{T0+1}, 1"); a(f"s_lshl_b32 s{T0+1}, s{T0+1}, 10")
        a(f"v_and_b32 v30, 0x1f0, v{V_L16}")
        a(f"v_cmp_gt_u32 vcc, {24*16}, v30")
        a(f"v_mov_b32 v31, s{T0}"); a(f"v_mov_b32 v{V_T1}, s{T0+1}")
        a(f"v_cndmask_b32 v31, v{V_T1}, v31, vcc")
        a(f"v_lshl_add_u32 v30, v30, 3, v31")
        a(f"s_mov_b32 s{TA+4}, {FRP_GU}")
        self.poll_issue(30, f"s{TA+4}", 31)

    def gu_poll_check(self):
        self.poll_check(30, f"s{TA+4}", 31)

    def fallback(self, Lfb, Lbk, q):
        b = Asm()
        S, O, Pp, K, V, Q = AT_S[0], AT_O[q], AT_P, AT_K[0], AT_V[0], AT_Q[q]
        vK, vV, vM, sJ, sN, sB = 30, 31, V_T2, TA + 10, TA + 11, TA + 12
        mf = lambda d, A, B, c: b(f"v_mfma_f32_32x32x16_bf16 {vr(d,16)}, {A}, {B}, {c}")
        b.label(Lfb)
        b("s_waitcnt lgkmcnt(0)")
        b.nop(16)
        b(f"s_min_u32 s{sN}, s{TA+q}, 8")
        b(f"s_add_u32 s{sB}, s{S_QB if q else S_QA}, 8"); b(f"s_lshl_b32 s{sB}, s{sB}, 12")

        def scores(tag):
            l1, l2, l3 = f"{Lfb}_{tag}a", f"{Lfb}_{tag}b", f"{Lfb}_{tag}c"
            b(f"ds_read_b128 {vr(K,4)}, v{vK} offset:{G}")
            b.drain(lg=True)
            b(f"s_cmp_eq_u32 s{sJ}, 0"); b(f"s_cbranch_scc1 {l1}")
            b(f"s_cmp_eq_u32 s{sJ}, 8"); b(f"s_cbranch_scc1 {l2}")
            mf(S, vr(K, 4), vr(Q, 4), "0"); b(f"s_branch {l3}")
            b.label(l1); mf(S, vr(K, 4), vr(Q, 4), vr(AT_MD, 16)); b(f"s_branch {l3}")
            b.label(l2); mf(S, vr(K, 4), vr(Q, 4), vr(AT_MF, 16))
            b.label(l3)
            b.nop(16)

        def loop_end(lab):
            b(f"v_subrev_u32 v{vK}, 4096, v{vK}"); b(f"v_subrev_u32 v{vV}, 4096, v{vV}")
            b(f"s_add_u32 s{sJ}, s{sJ}, 1"); b(f"s_cmp_le_u32 s{sJ}, s{sN}"); b(f"s_cbranch_scc1 {lab}")

        def start():
            b(f"v_add_u32 v{vK}, s{sB}, v28"); b(f"v_add_u32 v{vV}, s{sB}, v29"); b(f"s_mov_b32 s{sJ}, 0")
        start(); b(f"v_mov_b32 v{vM}, 0xff7fffff")
        b.label(Lfb + "_p1")
        scores("x")
        for r in range(0, 16, 2):
            b(f"v_max3_f32 v{vM}, v{vM}, v{S+r}, v{S+r+1}")
        loop_end(Lfb + "_p1")
        b(f"v_mov_b32 v{V_T1}, v{vM}"); b(f"v_permlane32_swap_b32 v{V_T1}, v{vM}"); b(f"v_max_f32 v{vM}, v{vM}, v{V_T1}")
        for r in range(16):
            b(f"v_mov_b32 v{O+r}, 0")
        start()
        b.label(Lfb + "_p2")
        b(f"s_mov_b64 exec, {sr(S_E0, 2)}")
        b(f"ds_read_b128 {vr(V,4)}, v{vV} offset:{G+2048}"); b(f"ds_read_b128 {vr(V+4,4)}, v{vV} offset:{G+3072}")
        b("s_mov_b64 exec, -1")
        scores("y")
        for r in range(16):
            b(f"v_sub_f32 v{S+r}, v{S+r}, v{vM}")
        for r in range(16):
            b(f"v_exp_f32 v{S+r}, v{S+r}")
        for j in range(8):
            b(f"v_cvt_pk_bf16_f32 v{Pp+j}, v{S+2*j}, v{S+2*j+1}")
        mf(O, vr(V, 4), vr(Pp, 4), vr(O, 16)); mf(O, vr(V + 4, 4), vr(Pp + 4, 4), vr(O, 16))
        b.nop(16)
        loop_end(Lfb + "_p2")
        b(f"s_branch {Lbk}")
        self.a.ool.append("\n".join(b.lines))

    def epoch_update(self):
        a = self.a
        Ls = a.newlabel("noepoch")
        a(f"s_or_b32 s{T0}, s2, s{S_W}"); a(f"s_cmp_lg_u32 s{T0}, 0"); a(f"s_cbranch_scc1 {Ls}")
        a(f"v_lshlrev_b32 v30, 3, v{V_L16}")
        for q in range(4):
            a(f"s_mov_b32 s{T0}, {HELLO + q*8192}")
            self.poll(30, f"s{T0}", 31, "mask", V_T1)
        self.flag_line("0", maybe=True)
        a.label(Ls)
```

```python
from gen2_c import *

NT = [V_X, V_X + 16, V_X + 32]


def nxreg(n):
    if n < 16: return V_ACC + 4 * n
    if n < 36: return V_X + 48 + 4 * (n - 16)
    return V_ACC + 64 + 4 * (n - 36)


class Gen(ATT):
    def ring1_slot(self, n):
        s, i = divmod(n, 8)
        return G + 16384 * ((3 + (s >> 1)) & 3) + 4096 * (i >> 1) + 2048 * (s & 1) + 1024 * (i & 1)

    def ring1_fill(self, s):
        a = self.a
        sG = TA + 5

        def f(i):
            if i == 0:
                if s == 0:
                    a(f"s_mul_i32 s{sG}, s{S_C}, {PGU_P}"); a(f"s_lshl_b32 s3, s{S_W}, 11")
                    a(f"s_add_u32 s{sG}, s{sG}, s3"); a(f"s_add_u32 s{sG}, s{sG}, {PGU}")
                if s == 21:
                    a(f"s_cmp_lt_u32 s{S_C}, 6"); a(f"s_cselect_b32 s{sG}, s{sG}, {OOB}")
                a(f"s_add_u32 m0, s{S_W4K}, {self.ring1_slot(8*s)}")
            a.named[f"ring{s}"] = a(f"buffer_load_dwordx4 v{V_L16}, {WS}, s{sG} offen offset:{1024*i} {self.P('ring_sc','sc1')} lds")
            if i == 1:
                a(f"s_add_u32 s{sG}, s{sG}, 8192")
        return [lambda: f(0), lambda: f(1)]

    def ring2_slot(self, n):
        q, i = divmod(n, 4)
        if q < 24: return WQ + 4096 * q + 1024 * i
        if q < 40:
            qq = q - 24
            return G + 16384 * ((3 + (qq >> 2)) & 3) + 4096 * i + 1024 * (qq & 3)
        return WQ + 4096 * (q - 40) + 1024 * i

    def ring2_fill(self, n0, n1):
        a = self.a
        sG, sW1 = TA + 5, TA + 8

        def f(q):
            if q == 0:
                a(f"s_lshl_b32 s{sW1}, s{S_W}, 10")
            if q in (0, 33, 42):
                a(f"s_mul_i32 s{sG}, s{S_C}, {PGU_P}")
                if q == 33: a(f"s_mul_i32 s3, s{S_W}, 5120")
                a(f"s_add_u32 s{sG}, s{sG}, {'s3' if q == 33 else f's{sW1}'}")
                a(f"s_add_u32 s{sG}, s{sG}, {PGU + {0: 0, 33: 4096, 42: 165*1024}[q]}")
                if q == 42:
                    a(f"s_cmp_lt_u32 s{S_C}, 6"); a(f"s_cselect_b32 s{sG}, s{sG}, {OOB}")
            if q in (41, 50):
                a(f"s_cmp_eq_u32 s{S_W}, 0"); a(f"s_cselect_b32 s{sG}, s{sG}, {OOB}")
            a(f"s_add_u32 m0, s{S_W4K if 24 <= q < 40 else sW1}, {self.ring2_slot(4*q)}")
            a.named[f"rq{q}"] = a(f"buffer_load_dwordx4 v{V_L16}, {WS}, s{sG} offen {self.P('ring_sc','sc1')} lds")
            a(f"s_add_u32 s{sG}, s{sG}, {5120 if q < 33 else (20480 if q < 42 else 4096)}")
        return [lambda q=q: f(q) for q in range(n0 // 4, n1 // 4)]

    def narrow_poll_addr(self, L, down, late=False, va=V_T1, so=T0):
        a = self.a
        a(f"s_and_b32 s{so}, s{S_TBS}, 0xfffffffe"); a(f"s_lshl_b32 s{so}, s{so}, 11")
        a(f"v_and_b32 v{va}, 0x200, v{V_L16}"); a(f"v_lshlrev_b32 v{va}, 2, v{va}")
        if not down:
            a(f"s_lshl_b32 s3, s{S_W}, 5"); a(f"s_add_u32 s{so}, s{so}, s3"); a(f"s_add_u32 s{so}, s{so}, {FL + (8*L+0)*128}")
            a(f"v_bfe_u32 v{V_T2}, v{V_L16}, 2, 5"); a(f"v_add_u32 v{va}, v{va}, v{V_T2}")
        elif not late:
            a(f"s_lshl4_add_u32 s{so}, s{S_W}, s{so}"); a(f"s_add_u32 s{so}, s{so}, {FL + (8*L+2)*128}")
            a(f"v_bfe_u32 v{V_T2}, v{V_L16}, 2, 4"); a(f"v_add_u32 v{va}, v{va}, v{V_T2}")
        else:
            a(f"s_add_u32 s{so}, s{so}, {FL + (8*L+2)*128}")
            a(f"s_cmp_lt_u32 s{S_W}, 2"); a(f"s_cselect_b32 s3, 16, 0")
            a(f"v_and_b32 v{V_T2}, s3, v{V_L16}")
            a(f"s_lshl2_add_u32 s3, s{S_W}, 128")
            a(f"v_add_u32 v{V_T2}, s3, v{V_T2}")
            if L == 1:
                a(f"v_and_b32 v{V_AUG}, 64, v{V_L16}"); a(f"v_cmp_eq_u32 vcc, 0, v{V_AUG}")
                a(f"s_lshl4_add_u32 s3, s{S_W}, 64")
                a(f"v_bfe_u32 v{V_AUG}, v{V_L16}, 2, 4"); a(f"v_add_u32 v{V_AUG}, s3, v{V_AUG}")
                a(f"v_cndmask_b32 v{V_T2}, v{V_T2}, v{V_AUG}, vcc")
            a(f"v_add_u32 v{va}, v{va}, v{V_T2}")

    def dn_seq(self, L):
        if L == 0:
            early, late = list(range(20)), [20, 21]
        else:
            early, late = [i for i in range(20) if i % 5 != 4], [4, 9, 14, 19, 20, 21]
        n = len(early) + len(late) - 12
        return ([(0, i) for i in early] + [(1, i) for i in early[:n]] + [(0, i) for i in late]
                + [(1, i) for i in early[n:] + late]), len(early) + n

    def narrow_loads(self, L, down):
        a = self.a
        seq = self.dn_seq(L)[0] if down else [(h, i) for h in range(2) for i in range(8)]
        sB = [TA + 10, TA + 11]; sE = [TA + 12, TA + 13]; sX = TA + 14; sD = TA + 15
        state = {"cur": None}

        def setup():
            for h, tb in enumerate((S_TBO, S_TBS)):
                a(f"s_mul_i32 s{sE[h]}, s{tb}, {HB_P}"); a(f"s_add_u32 s{sE[h]}, s{sE[h]}, {HB}")
                a(f"s_mul_i32 s{sB[h]}, s{S_W}, {(20 if down else 8)*1024}"); a(f"s_add_u32 s{sB[h]}, s{sB[h]}, s{sE[h]}")
                if down:
                    a(f"s_add_u32 s3, s{S_W}, 80"); a(f"s_lshl_b32 s3, s3, 10"); a(f"s_add_u32 s{sE[h]}, s{sE[h]}, s3")
            if down:
                a(f"s_cmp_lt_u32 s{S_W}, 2"); a(f"s_cselect_b32 s{sD}, 4096, 0")

        def xl(n):
            h, i = seq[n]
            if i < 4:
                so, o = sB[h], i * 1024
            elif i < 20:
                prev = seq[n - 1]
                if not (prev[0] == h and prev[1] >> 2 == i >> 2):
                    a(f"s_add_u32 s{sX}, s{sB[h]}, {(i >> 2) * 4096}")
                so, o = sX, (i & 3) * 1024
            elif i == 20:
                so, o = sE[h], 0
            else:
                a(f"s_add_u32 s{sX}, s{sE[h]}, s{sD}")
                so, o = sX, 0
            a(f"buffer_load_dwordx4 {vr(nxreg(n),4)}, v{V_L16}, {WS}, s{so} offen offset:{o} sc1")
        return seq, setup, [lambda n=n: xl(n) for n in range(len(seq))]

    def narrow(self, L, down, pre=0):
        a = self.a
        AW = A_WD if down else A_WO
        seq, setup, loads = self.narrow_loads(L, down)
        nse = len(seq)
        LA = self.P("n_la", 8)
        if pre == 0:
            self.poll_issue(V_T1, f"s{T0}", V_T2)
            setup()
            self.poll_check(V_T1, f"s{T0}", V_T2)
            self.stamp(f"{'h' if down else 'o'}poll{L}")
        loads = loads[pre:]
        issued = pre
        late_at = self.dn_seq(L)[1] if down else None

        def issue():
            nonlocal issued
            if not loads: return
            if issued == late_at:
                self.poll_check(V_T1, f"s{TA}", V_RS)
            popn(loads); issued += 1
            if late_at is not None and issued == late_at - self.P("late_d", 5):
                self.poll_issue(V_T1, f"s{TA}", V_RS)
        while issued < min(LA, nse): issue()
        if down: self.narrow_poll_addr(L, True, late=True, so=TA)
        for x, vv in ((2, 28), (3, 29), (1, 30)):
            a(f"s_xor_b32 s3, s{S_W4K}, {x*4096}"); a(f"v_add_u32 v{vv}, s3, v{V_L16}")
        a(f"v_add_u32 v31, s{S_W4K}, v{V_L16}")
        wr = lambda i, q: a(f"ds_write_b128 v{28+i}, {vr(NT[i]+4*q,4)} offset:{G + 16384*i + 1024*q}")
        rdp = lambda i, q: a(f"ds_read_b128 {vr(NT[i]+4*q,4)}, v31 offset:{G + 16384*i + 1024*q}")
        last_other = max(n for n in range(nse) if seq[n][0] == 0)
        lead = self.P("lead", 6)
        split = down
        fill = []
        delay = 0
        started = set()
        ownq = []

        def mm(t, w, n):
            nonlocal delay
            c = None
            if t != V_OWN and t not in started:
                started.add(t); c = "0"
            self.mfma(t, ar(AW + 8 * seq[n][1] + 4 * w, 4), vr(nxreg(n), 4), c)
            if delay: delay -= 1
            else: popn(fill)

        def bar2():
            a.drain(lg=True); a("s_barrier")
        for n in range(nse):
            if seq[n][0] == 0:
                mm(NT[0], 0, n)
                issue()
                mm(NT[1], 1, n)
            else:
                mm(NT[2], 1, n)
                issue()
                if n >= nse - lead: ownq.append(n)
                else: mm(V_OWN, 0, n)
            self.stamp(f"{'dn' if down else 'wo'}{L}_{n}", fine=True)
            if n == 1: a("s_barrier")
            if n == last_other:
                delay = 3
                nop = lambda: None
                if split:
                    for t in range(2):
                        for q in range(4): fill += [lambda t=t, q=q: wr(t, q)] + ([nop] if q & 1 else [])
                    fill += [bar2, lambda: [rdp(0, q) for q in range(4)], lambda: [rdp(1, q) for q in range(4)]]
                else:
                    fill = [lambda t=t, q=q: wr(t, q) for t in range(2) for q in range(4)]
        flush(fill)
        delay = 2
        fill = [lambda q=q: wr(2, q) for q in range(4)]
        for n in ownq: mm(V_OWN, 0, n)
        flush(fill)
        pk = lambda d, x, y: [a(f"v_pk_add_f32 {vr(d+r,2)}, {vr(x+r,2)}, {vr(y+r,2)}") for r in range(0, 16, 2)]
        final = down and L == 1
        if final:
            self.lane(V_T1)
            a(f"v_and_b32 v{V_T2}, 31, v{V_T1}"); a(f"v_lshlrev_b32 v{V_T2}, 10, v{V_T2}")
            a(f"v_lshrrev_b32 v{V_T1}, 5, v{V_T1}"); a(f"v_lshl_add_u32 v{V_T2}, v{V_T1}, 4, v{V_T2}")
            a(f"s_lshl_b32 s{T0}, s{S_TBS}, 15"); a(f"s_lshl_b32 s{T0+1}, s{S_FB}, 6"); a(f"s_add_u32 s{T0}, s{T0}, s{T0+1}")
        else:
            a(f"s_mul_i32 s{T0}, s{S_TBS}, {XB_P}"); a(f"s_add_u32 s{T0}, s{T0}, {XB}")
            a(f"s_lshl_b32 s{T0+1}, s{S_FB}, 11"); a(f"s_add_u32 s{T0+1}, s{T0+1}, s{T0}")
            a(f"s_lshr_b32 s{T0+2}, s{S_FB}, 2"); a(f"s_lshl_b32 s{T0+2}, s{T0+2}, 10"); a(f"s_add_u32 s{T0}, s{T0}, s{T0+2}")
            a(f"s_and_b32 s{T0+2}, s{S_FB}, 3"); a(f"s_lshl2_add_u32 s{T0}, s{T0+2}, s{T0}"); a(f"s_add_u32 s{T0}, s{T0}, 32768")
            a(f"s_lshl_b32 s{T0+2}, s{S_TBS}, 11"); a(f"s_lshl2_add_u32 s{T0+2}, s{S_FB}, s{T0+2}")
            a(f"s_add_u32 s{T0+2}, s{T0+2}, {FL + (8*L + (4 if down else 1))*128}")
        if split: pk(NT[0], NT[0], NT[1])
        a.drain(lg=True)
        a("s_barrier")
        self.stamp(f"{'dn' if down else 'wo'}mm{L}")
        if split:
            for q in range(4): rdp(2, q)
            pk(V_OWN, V_OWN, NT[0]); pk(V_OWN, V_OWN, NT[2])
        else:
            for i in range(3):
                for q in range(4): rdp(i, q)
            for i in range(3): pk(V_OWN, V_OWN, NT[i])
        PK = V_X
        toks = []
        for s in range(2):
            for j in range(4 * s, 4 * s + 4):
                a(f"v_cvt_pk_bf16_f32 v{PK+j}, v{V_OWN+2*j}, v{V_OWN+2*j+1}")
            if not final:
                toks.append(a(f"buffer_store_dwordx4 {vr(PK+4*s,4)}, v{V_L16}, {WS}, s{T0+1} offen offset:{1024*s} {self.dsc(L, 'x2' if down else 'x1')}"))
        if final:
            for s in range(2):
                a(f"v_permlane32_swap_b32 v{PK+4*s}, v{PK+4*s+2}")
                a(f"v_permlane32_swap_b32 v{PK+4*s+1}, v{PK+4*s+3}")
                a(f"buffer_store_dwordx4 {vr(PK+4*s,4)}, v{V_T2}, {sr(SRD_OUT,4)}, s{T0} offen offset:{32*s} {self.P('out_sc','')}")
            return
        s0, q0 = V_X + 8, V_X + 10
        a(f"v_pk_add_f32 {vr(s0,2)}, {vr(V_OWN,2)}, {vr(V_OWN+2,2)}")
        a(f"v_pk_mul_f32 {vr(q0,2)}, {vr(V_OWN,2)}, {vr(V_OWN,2)}")
        for r in range(2, 16, 2):
            if r >= 4: a(f"v_pk_add_f32 {vr(s0,2)}, {vr(s0,2)}, {vr(V_OWN+r,2)}")
            a(f"v_pk_fma_f32 {vr(q0,2)}, {vr(V_OWN+r,2)}, {vr(V_OWN+r,2)}, {vr(q0,2)}")
        a(f"v_add_f32 v{s0}, v{s0}, v{s0+1}"); a(f"v_add_f32 v{q0}, v{q0}, v{q0+1}")
        a(f"v_permlane32_swap_b32 v{s0}, v{q0}")
        a(f"v_add_f32 v{s0}, v{s0}, v{q0}")
        toks.append(a(f"buffer_store_dword v{s0}, v{V_L16}, {WS}, s{T0} offen"))
        self.flag_local([f"s{T0+2}"], toks)
        self.stamp(f"{'dn' if down else 'wo'}{L}")

    def gu_epi(self, L, acc, soff, imm, name):
        a = self.a
        ops = self.ops(*[f"v_mul_f32 v{acc+r}, v{V_RS}, v{acc+r}" for r in range(8)],
                       *[f"v_mul_f32 v{acc+r}, v{acc+r}, v{acc+8+r}" for r in range(8)],
                       *[f"v_cvt_pk_bf16_f32 v{acc+q}, v{acc+2*q}, v{acc+2*q+1}" for q in range(4)])

        def st():
            a.named[name] = a(f"buffer_store_dwordx4 {vr(acc,4)}, v{V_L16}, {WS}, {soff} offen offset:{imm} {self.dsc(L,'h')}")
        return ops + [st]

    def gu_start(self, L):
        a = self.a
        ST = V_ACC + 80
        a(f"v_bfe_u32 v{V_T1}, v{V_L16}, 2, 6")
        a(f"s_add_u32 s{T0}, s{S_FLW}, {(8*L+1)*128}")
        self.poll_issue(V_T1, f"s{T0}", V_T2)
        sX = TA
        a(f"s_mov_b32 s{sX}, s{S_XBW}")
        a(f"v_bfe_u32 v28, v{V_L16}, 4, 5"); a(f"v_lshlrev_b32 v28, 2, v28")
        a(f"v_and_b32 v29, 0x200, v{V_L16}"); a(f"v_add_u32 v28, v28, v29")
        a(f"v_add_u32 v30, 65536, v{V_L16}"); a(f"v_add_u32 v31, 131072, v{V_L16}")
        a(f"s_mul_i32 s{TA+1}, s{S_C}, 5120"); a(f"s_add_u32 s{TA+1}, s{TA+1}, s{S_HBW}"); a(f"s_add_u32 s{TA+2}, s{TA+1}, 4096")
        a(f"s_add_u32 s{TA+3}, s{S_C}, 80"); a(f"s_lshl_b32 s{TA+3}, s{TA+3}, 10"); a(f"s_add_u32 s{TA+3}, s{TA+3}, s{S_HBW}")
        a(f"s_lshl2_add_u32 s{TA+4}, s{S_C}, s{S_FLW}"); a(f"s_add_u32 s{TA+4}, s{TA+4}, {(8*L+2)*128}")
        a(f"s_add_u32 s{TA+6}, s{TA+4}, 64"); a(f"s_add_u32 s{TA+7}, s{TA+4}, 128")
        self.poll_check(V_T1, f"s{T0}", V_T2)
        self.stamp(f"x1poll{L}")

        def xl(k):
            dst = V_X + 4 * k if k < 32 else ST + 4 * (k - 32)
            a(f"buffer_load_dwordx4 {vr(dst,4)}, v{V_L16}, {WS}, s{sX} offen offset:{(k&3)*1024} sc1")
            if k & 3 == 3: a(f"s_add_u32 s{sX}, s{sX}, 4096")
        fill = self.stats_from_partials(ST) + self.ops(*[f"v_mov_b32 v{V_AUG+i}, v{V_AUG}" for i in (1, 2, 3)],
                                                      f"v_mul_f32 v{V_RS}, v{V_RS}, v{V_RS}")
        return [lambda k=k: xl(k) for k in range(36)], fill

    def gu_read(self, idx, slot, aug):
        a = self.a
        d = A_STG + 4 * (idx % 4)
        if aug:
            a(f"v_add_u32 v29, {slot}, v28")
            a(f"ds_read2_b32 {ar(d,2)}, v29 offset0:0 offset1:32")
            a(f"ds_read2_b32 {ar(d+2,2)}, v29 offset0:64 offset1:96")
        else:
            a(f"ds_read_b128 {ar(d,4)}, v{(V_L16, 30, 31)[slot >> 16]} offset:{slot & 0xffff}")

    def gateup1(self):
        a = self.a
        L = 0
        pf = self.P("g1_pf", 5)
        for s in range(2, pf): flush(self.ring1_fill(s))
        loads, fill = self.gu_start(L)
        popn(loads, self.P("g1_pre", 8))
        dma = []
        for s in range(pf, 8): dma += self.ring1_fill(s)
        NA, NALL = 165, 198

        def rd(n):
            if n % 8 == 0:
                s = n // 8
                a.wait(a.named[f"ring{s}"])
                a("s_barrier")
                if s >= 2 and s + 6 < 25: dma.extend(self.ring1_fill(s + 6))
            self.gu_read(n, self.ring1_slot(n), 160 <= n < 165 or n == 197)
        for n in range(4): rd(n)
        x2 = self.P("g1_x2", 8)
        for n in range(NA):
            k, j = divmod(n, 5)
            X = vr(V_X + 4 * k, 4) if k < 32 else vr(V_AUG, 4)
            if k == 32 and j == 0: flush(fill)
            self.mfma(V_ACC + 16 * j, ar(A_STG + 4 * (n % 4), 4), X, "0" if k == 0 else None)
            if j == 0 or (j == 3 and k < x2): popn(loads)
            elif j in (1, 2, 4) and (j != 1 or len(dma) > 2): popn(dma)
            self.stamp(f"g0_{n}", fine=True)
            if n + 4 < 168: rd(n + 4)
            if k >= 28: popn(fill, 2)
        flush(dma)
        self.stamp(f"gua{L}")
        L5 = a.newlabel("five"); Lj = a.newlabel("gujoin")
        a(f"s_cmp_ge_u32 s{S_C}, 6"); a(f"s_cbranch_scc1 {L5}")
        epiA = lambda: sum([self.gu_epi(L, V_ACC + 16 * j, f"s{TA+1+(j>>2)}", (j & 3) * 1024, "hA") for j in range(5)], [])
        keep = a.begin_ool()
        a.label(L5)
        flush(epiA())
        self.narrow_poll_addr(L, True)
        a.drain(lg=True)
        self.flag_local([f"s{TA+4}"], [a.named["hA"]])
        a(f"s_branch {Lj}")
        a.end_ool(keep)
        fill = epiA()
        rd(168)
        for n in range(NA, NALL):
            k = n - NA
            X = vr(V_X + 4 * k, 4) if k < 32 else vr(V_AUG, 4)
            self.mfma(V_ACC + 80, ar(A_STG + 4 * (n % 4), 4), X, "0" if k == 0 else None)
            if n + 4 < NALL: rd(n + 4)
            if k >= 1: popn(fill, 5)
            if k == self.P("g1_fa", 31): self.flag_local([f"s{TA+4}"], [a.named["hA"]])
        assert not fill
        self.narrow_poll_addr(L, True)
        flush(self.gu_epi(L, V_ACC + 80, f"s{TA+3}", 0, "hC"))
        self.flag_local([f"s{TA+7}"], [a.named["hC"]])
        a.label(Lj)
        self.stamp(f"gu{L}")

    def gateup2(self):
        a = self.a
        L = 1
        loads, fill = self.gu_start(L)
        popn(loads, self.P("g2_pre", 6))
        pos = list(range(165)) + list(range(168, 201))
        dma = self.ring2_fill(112, 160)
        PRE = 16

        def rd(m):
            n = pos[m]
            if n == 60:
                a("s_barrier")
                dma.extend(self.ring2_fill(160, 204))
            if n in (112, 160):
                a.wait(a.named["rq39" if n == 112 else "rq50"])
                a("s_barrier")
            self.gu_read(m, self.ring2_slot(n), 128 <= n < 132 or n in (164, 200))
        for m in range(4): rd(m)
        for m in range(132):
            k, j = divmod(m, 4)
            X = vr(V_X + 4 * k, 4) if k < 32 else vr(V_AUG, 4)
            if k == 32 and j == 0: flush(fill)
            self.mfma(V_ACC + 16 * j, ar(A_STG + 4 * (m % 4), 4), X, "0" if k == 0 else None)
            if m % 5 in (0, 2):
                if loads and (len(loads) > 36 - 10 - k or not dma or m % 5 == 0): popn(loads)
                else: popn(dma)
            self.stamp(f"g1_{m}", fine=True)
            rd(m + 4)
            if k >= 27: popn(fill, 2)
        assert not loads
        self.stamp("gua1")
        fill = sum([self.gu_epi(L, V_ACC + 16 * j, f"s{TA+1}", j * 1024, "hA") for j in range(4)], [])
        seq, setup, nl = self.narrow_loads(L, True)
        for m in range(132, 165):
            k = m - 132
            X = vr(V_X + 4 * k, 4) if k < 32 else vr(V_AUG, 4)
            self.mfma(V_ACC + 64, ar(A_STG + 4 * (m % 4), 4), X, "0" if k == 0 else None)
            if m % 2 == 0: popn(dma)
            rd(m + 4)
            if k >= 1: popn(fill, 5)
            if k == 20: setup()
            if k == 23: self.narrow_poll_addr(L, True)
            if k == self.P("g2_fa", 27): self.flag_local([f"s{TA+4}"], [a.named["hA"]])
        assert not fill and not dma
        self.stamp("gub1")
        L5 = a.newlabel("five"); Lj = a.newlabel("gujoin")
        a(f"s_cmp_ge_u32 s{S_C}, 6"); a(f"s_cbranch_scc1 {L5}")
        keep = a.begin_ool()
        a.label(L5)
        flush(self.gu_epi(L, V_ACC + 64, f"s{TA+2}", 0, "hB"))
        a.drain(lg=True)
        self.flag_local([f"s{TA+6}"], [a.named["hB"]])
        self.poll(V_T1, f"s{T0}", V_T2)
        popn(self.narrow_loads(L, True)[2], PRE)
        a.drain(vm=True)
        a(f"s_branch {Lj}")
        a.end_ool(keep)
        fill = self.gu_epi(L, V_ACC + 64, f"s{TA+2}", 0, "hB")
        pk = self.P("g2_pk", 8)
        nl = nl[:PRE]
        for m in range(165, 198):
            k = m - 165
            X = vr(V_X + 4 * k, 4) if k < 32 else vr(V_AUG, 4)
            self.mfma(V_ACC + 80, ar(A_STG + 4 * (m % 4), 4), X, "0" if k == 0 else None)
            if m + 4 < 198: rd(m + 4)
            self.stamp(f"g1_{m}", fine=True)
            if k == 0: self.poll_issue(V_T1, f"s{T0}", V_ACC)
            if k >= 1: popn(fill, 5)
            if k == pk: self.poll_check(V_T1, f"s{T0}", V_ACC)
            if k == pk + 8: self.flag_local([f"s{TA+6}"], [a.named["hB"]])
            if k >= pk and (k - pk) % 2 == 0: popn(nl)
        flush(self.gu_epi(L, V_ACC + 80, f"s{TA+3}", 0, "hC"))
        flush(nl)
        self.flag_local([f"s{TA+7}"], [a.named["hC"]])
        a.label(Lj)
        self.stamp("gu1")
        return PRE

    def body(self):
        self.prologue()
        self.qkv1()
        if self.check_stop("qkv1"): return
        for L in range(2):
            if L == 1:
                self.qkv2()
                if self.check_stop("qkv2"): return
            self.attention(L)
            if self.check_stop(f"att{L}"): return
            self.narrow(L, False)
            if self.check_stop(f"wo{L}"): return
            pre = self.gateup2() if L else self.gateup1()
            if self.check_stop(f"gu{L}"): return
            self.narrow(L, True, pre or 0)
            if self.check_stop(f"dn{L}"): return
        self.finish()

    def build(self):
        self.body()
        txt = self.a.text() + "L_codeend:\n s_endpgm\n"
        txt += f""".section .rodata,"a"
.p2align 6
.amdhsa_kernel {KN}
  .amdhsa_next_free_vgpr 512
  .amdhsa_next_free_sgpr 102
  .amdhsa_accum_offset 256
  .amdhsa_group_segment_fixed_size 0
  .amdhsa_kernarg_size 80
  .amdhsa_user_sgpr_count 2
  .amdhsa_user_sgpr_kernarg_segment_ptr 1
  .amdhsa_system_sgpr_workgroup_id_x 1
.end_amdhsa_kernel
"""
        return txt


if __name__ == "__main__":
    import argparse
    ap = argparse.ArgumentParser()
    ap.add_argument("-o", default="k.s")
    ap.add_argument("--stop"); ap.add_argument("--stamps", action="store_true")
    ap.add_argument("--slow", action="store_true"); ap.add_argument("--fallback", action="store_true")
    args = ap.parse_args()
    g = Gen(stop=args.stop, stamps=args.stamps, force_slow=args.slow, force_fallback=args.fallback)
    t = g.build()
    open(args.o, "w").write(t)
    print("instructions", g.a.ninstr, "nop states", g.a.nops, "bytes", len(t))
```
